```python
import torch

def _softmax(x, axis=-1):
    return torch.softmax(x, dim=axis)
def _gelu(x):
    return torch.nn.functional.gelu(x, approximate="tanh")
def _silu(x):
    return torch.nn.functional.silu(x)
def _sigmoid(x):
    return torch.sigmoid(x)
def _layernorm(x, axis=-1, eps=1e-5):
    m = x.mean(dim=axis, keepdim=True)
    v = x.var(dim=axis, keepdim=True, unbiased=False)
    return (x - m) / torch.sqrt(v + eps)
def _scatter_add(tgt, idx, src, axis=0):
    return tgt.clone().index_add_(axis, idx, src)
def _segment_sum(src, seg, n):
    out = torch.zeros((n,) + src.shape[1:], dtype=src.dtype)
    return out.index_add_(0, seg, src)
def _pad(x, pw):
    flat = tuple(v for pair in reversed(pw) for v in pair)
    return torch.nn.functional.pad(x, flat)

kernel_name = 'standalone__softmax_full_bidir__decode'

def setup_inputs():

    _w = (lambda a: (lambda t: t.to(torch.bfloat16) if t.is_floating_point() else t)(torch.as_tensor(a)))
    B, H, Sq, Skv, Dh = 4, 32, 1, 16384, 128
    return {
        "q": _w((lambda *s: torch.randn(*s, dtype=torch.bfloat16) * 0.8)(B, H, Sq, Dh)),
        "k": _w((lambda *s: torch.randn(*s, dtype=torch.bfloat16) * 0.8)(B, H, Skv, Dh)),
        "v": _w((lambda *s: torch.randn(*s, dtype=torch.bfloat16) * 0.05)(B, H, Skv, Dh)),
    }

def reference(q, k, v):
    scale = q.shape[-1] ** -0.5
    scores = torch.einsum('bhqd,bhkd->bhqk', q, k) * scale
    attn = _softmax(scores, axis=-1)
    return torch.einsum('bhqk,bhkd->bhqd', attn, v)
```

```python
import argparse, struct, math

NAME = "standalone__softmax_full_bidir__decode"
HEADS = 128
SKV = 16384
HEAD_BYTES = SKV * 256
CONST_C = (128 ** -0.5) * math.log2(math.e)


def f32bits(x):
    return struct.unpack("<I", struct.pack("<f", x))[0]


HEADER = """; Kernarg layout for this problem (48 bytes, ptrs only, base s[0:1]):
"""


class Gen:
    def __init__(self):
        self.lines = []

    def __call__(self, s):
        self.lines.append("    " + s)

    def label(self, s):
        self.lines.append(s + ":")

    def raw(self, s):
        self.lines.append(s)

    def text(self):
        return "\n".join(self.lines) + "\n"


def kd(name, vgpr, sgpr):
    acc = (vgpr + 3) // 4 * 4
    return f""".amdhsa_kernel {name}
  .amdhsa_next_free_vgpr {vgpr}
  .amdhsa_next_free_sgpr {sgpr}
  .amdhsa_accum_offset {acc}
  .amdhsa_group_segment_fixed_size 0
  .amdhsa_kernarg_size 48
  .amdhsa_user_sgpr_count 2
  .amdhsa_user_sgpr_kernarg_segment_ptr 1
  .amdhsa_system_sgpr_workgroup_id_x 1
.end_amdhsa_kernel
"""


def gen(S=2, W=8, D=6, kflags="nt", vflags="nt", lds_pad=0, wmap="inter", hmap="hs",
        nocompute=False, minvgpr=0):
    g = Gen()
    NWG = HEADS * S
    chunk = HEAD_BYTES // S
    T = chunk // (4096 * W)
    assert T * 4096 * W == chunk and T >= D
    lds_bytes = max(W * 512 + W * 8, lds_pad)
    k1 = NAME + "_kernel"
    k2 = "combine_kernel"
    PART = 1024

    vKoff, vVoff, vM, vMC, vL, vT, vP, vPK, vTmp, vTmp2 = 1, 2, 3, 4, 5, 6, 7, 8, 9, 10
    DS, DO, BP0, BP1, MASK, BQ, BUF = 12, 16, 20, 24, 28, 32, 48
    nv = max(BUF + 32 * D, minvgpr)

    def r4(b):
        return f"v[{b}:{b+3}]"

    def kreg(st, n):
        return BUF + 32 * st + 4 * n

    def vreg(st, n):
        return BUF + 32 * st + 16 + 4 * n

    g.raw(HEADER.rstrip("\n"))
    g.raw(f"; @launch kernel={k1} grid=({NWG},1,1) block=({64*W},1,1) lds={lds_bytes}")
    g.raw(f"; @launch kernel={k2} grid=({HEADS},1,1) block=(64,1,1) lds=0")
    g.raw('.amdgcn_target "amdgcn-amd-amdhsa--gfx950"')
    g.raw(".text")
    g.raw(f".globl {k1}")
    g.raw(".p2align 8")
    g.raw(f".type {k1},@function")
    g.label(k1)
    g(f"s_cmp_ge_u32 s2, {NWG}")
    g("s_cbranch_scc1 L_end1")
    g("s_load_dwordx4 s[4:7], s[0:1], 0")
    g("s_load_dwordx2 s[8:9], s[0:1], 16")
    g("s_load_dwordx2 s[10:11], s[0:1], 40")
    if hmap == "hs":
        g(f"s_lshr_b32 s24, s2, {int(math.log2(S))}")
        g(f"s_and_b32 s25, s2, {S-1}")
    else:
        g(f"s_and_b32 s24, s2, {HEADS-1}")
        g(f"s_lshr_b32 s25, s2, 7")
    g("v_and_b32 v11, 63, v0")
    g("v_lshrrev_b32 v12, 6, v0")
    g("v_and_b32 v13, 15, v11")
    g("v_lshrrev_b32 v14, 4, v11")
    g("v_readfirstlane_b32 s26, v12")
    if wmap == "inter":
        g("v_lshlrev_b32 v15, 12, v12")
        step = 4096 * W
    else:
        g(f"v_mul_u32_u24 v15, {T*4096}, v12")
        step = 4096
    g("v_lshrrev_b32 v16, 2, v13")
    g("v_lshlrev_b32 v16, 8, v16")
    g("v_and_b32 v17, 3, v13")
    g("v_lshlrev_b32 v17, 4, v17")
    g("v_lshlrev_b32 v18, 6, v14")
    g("v_add_u32 v17, v17, v18")
    g(f"v_add3_u32 v{vKoff}, v16, v17, v15")
    g("v_lshlrev_b32 v16, 4, v11")
    g(f"v_add_u32 v{vVoff}, v16, v15")
    g("s_lshl_b32 s27, s24, 22")
    g("s_lshr_b32 s28, s24, 10")
    g(f"s_mul_i32 s29, s25, {chunk}")
    g("s_add_u32 s27, s27, s29")
    g("s_addc_u32 s28, s28, 0")
    g("s_lshl_b32 s30, s24, 8")
    g("s_waitcnt lgkmcnt(0)")
    g("s_add_u32 s12, s6, s27")
    g("s_addc_u32 s13, s7, s28")
    g("s_and_b32 s13, s13, 0xffff")
    g(f"s_mov_b32 s14, {chunk}")
    g("s_mov_b32 s15, 0x00020000")
    g("s_add_u32 s16, s8, s27")
    g("s_addc_u32 s17, s9, s28")
    g("s_and_b32 s17, s17, 0xffff")
    g(f"s_mov_b32 s18, {chunk}")
    g("s_mov_b32 s19, 0x00020000")
    g("s_add_u32 s4, s4, s30")
    g("s_addc_u32 s5, s5, 0")
    g(f"global_load_dwordx4 v[20:23], v17, s[4:5]")
    g("s_mov_b32 s20, 0")
    kf = (" " + kflags) if kflags else ""
    vf = (" " + vflags) if vflags else ""

    def loadK(st):
        for n in range(4):
            g(f"buffer_load_dwordx4 {r4(kreg(st,n))}, v{vKoff}, s[12:15], s20 offen offset:{n*1024}{kf}")

    def loadV(st):
        for n in range(4):
            g(f"buffer_load_dwordx4 {r4(vreg(st,n))}, v{vVoff}, s[16:19], s20 offen offset:{n*1024}{vf}")

    for st in range(D):
        loadK(st)
        loadV(st)
        g(f"s_add_u32 s20, s20, {step}")
    g(f"s_mov_b32 s22, 0x{f32bits(CONST_C):08x}")
    g(f"s_mov_b32 s21, {T}")
    g(f"v_mov_b32 v{vM}, 0xff800000")
    g(f"v_mov_b32 v{vMC}, 0xff800000")
    g(f"v_mov_b32 v{vL}, 0")
    g("v_mov_b32 v24, 0xffff")
    g("v_mov_b32 v25, 0xffff0000")
    for j in range(4):
        g(f"v_cmp_eq_u32 vcc, {2*j}, v13")
        g(f"v_cmp_eq_u32 s[32:33], {2*j+1}, v13")
        g("s_nop 1")
        g(f"v_cndmask_b32 v{MASK+j}, 0, v24, vcc")
        g(f"v_cndmask_b32 v{MASK+j}, v{MASK+j}, v25, s[32:33]")
    g("v_lshrrev_b32 v26, 2, v13")
    g(f"s_waitcnt vmcnt({min(8*D,63)})" if 8 * D <= 63 else "s_waitcnt vmcnt(63)")
    assert 8 * D <= 63
    for n in range(4):
        g(f"v_cmp_eq_u32 vcc, {n}, v26")
        g("s_nop 1")
        for j in range(4):
            g(f"v_cndmask_b32 v{BQ+4*n+j}, 0, v{20+j}, vcc")
    for j in range(4):
        g(f"v_mov_b32 v{DO+j}, 0")
    g("s_nop 1")

    NW = 8 * D - 4
    g.raw(".p2align 3")
    g.label("L_loop")
    for st in range(D):
        g(f"s_cmp_gt_u32 s21, {D}")
        g(f"s_cselect_b32 s14, {chunk}, 0")
        g(f"s_cselect_b32 s18, {chunk}, 0")
        g(f"s_waitcnt vmcnt({NW})")
        if not nocompute:
            for n in range(4):
                c = "0" if n == 0 else r4(DS)
                g(f"v_mfma_f32_16x16x32_bf16 {r4(DS)}, {r4(kreg(st,n))}, {r4(BQ+4*n)}, {c}")
        loadK(st)
        if not nocompute:
            g("s_nop 3")
            g(f"v_mov_b32_dpp v{vT}, v{DS} quad_perm:[0,0,0,0] row_mask:0xf bank_mask:0xf")
            g(f"v_mov_b32_dpp v{vTmp}, v{DS+2} quad_perm:[2,2,2,2] row_mask:0xf bank_mask:0xf")
            g("s_nop 0")
            g(f"v_add_f32_dpp v{vT}, v{DS+1}, v{vT} quad_perm:[1,1,1,1] row_mask:0xf bank_mask:0xf")
            g(f"v_add_f32_dpp v{vTmp}, v{DS+3}, v{vTmp} quad_perm:[3,3,3,3] row_mask:0xf bank_mask:0xf")
            g(f"v_add_f32 v{vT}, v{vT}, v{vTmp}")
            g(f"v_cmp_gt_f32 vcc, v{vT}, v{vM}")
            g(f"s_cbranch_vccnz L_upd{st}")
            g.label(f"L_back{st}")
            g(f"v_fma_f32 v{vP}, v{vT}, s22, -v{vMC}")
            g(f"v_exp_f32 v{vP}, v{vP}")
            g("s_nop 0")
            g(f"v_cvt_pk_bf16_f32 v{vPK}, v{vP}, v{vP}")
            g(f"v_add_f32 v{vL}, v{vL}, v{vP}")
        g(f"s_waitcnt vmcnt({NW})")
        if not nocompute:
            for n in range(4):
                bp = BP0 if n % 2 == 0 else BP1
                for j in range(4):
                    g(f"v_and_b32_dpp v{bp+j}, v{vPK}, v{MASK+j} row_newbcast:{4*n} row_mask:0xf bank_mask:0xf")
                if n > 0:
                    pb = BP0 if (n - 1) % 2 == 0 else BP1
                    g(f"v_mfma_f32_16x16x32_bf16 {r4(DO)}, {r4(vreg(st,n-1))}, {r4(pb)}, {r4(DO)}")
            g("s_nop 1")
            g(f"v_mfma_f32_16x16x32_bf16 {r4(DO)}, {r4(vreg(st,3))}, {r4(BP1)}, {r4(DO)}")
        loadV(st)
        g(f"s_add_u32 s20, s20, {step}")
        g("s_sub_u32 s21, s21, 1")
        g("s_cmp_eq_u32 s21, 0")
        if st < D - 1:
            g("s_cbranch_scc1 L_done")
        else:
            g("s_cbranch_scc0 L_loop")
    g.label("L_done")
    g("s_waitcnt vmcnt(0)")
    g("v_and_b32 v11, 63, v0")
    g("v_and_b32 v13, 15, v11")
    g("v_lshrrev_b32 v14, 4, v11")
    g("s_nop 1")
    g(f"v_add_f32_dpp v{vL}, v{vL}, v{vL} row_ror:4 row_mask:0xf bank_mask:0xf")
    g("s_nop 1")
    g(f"v_add_f32_dpp v{vL}, v{vL}, v{vL} row_ror:8 row_mask:0xf bank_mask:0xf")
    g(f"v_mov_b32 v{vTmp}, v{vL}")
    g("s_nop 1")
    g(f"v_permlane16_swap_b32 v{vL}, v{vTmp}")
    g("s_nop 1")
    g(f"v_add_f32 v{vL}, v{vL}, v{vTmp}")
    g(f"v_mov_b32 v{vTmp}, v{vL}")
    g("s_nop 1")
    g(f"v_permlane32_swap_b32 v{vL}, v{vTmp}")
    g("s_nop 1")
    g(f"v_add_f32 v{vL}, v{vL}, v{vTmp}")
    g("s_lshl_b32 s27, s26, 9")
    g("v_lshlrev_b32 v20, 7, v14")
    g("v_lshlrev_b32 v21, 2, v13")
    g("v_add3_u32 v20, v20, v21, s27")
    g("s_lshl_b32 s28, s26, 3")
    g(f"s_add_u32 s28, s28, {W*512}")
    g("v_mov_b32 v21, s28")
    g("v_cmp_gt_u32 vcc, 8, v13")
    g("s_and_saveexec_b64 s[32:33], vcc")
    for j in range(4):
        g(f"ds_write_b32 v20, v{DO+j} offset:{j*32}")
    g(f"ds_write_b64 v21, v[{vMC}:{vL}]")
    g("s_mov_b64 exec, s[32:33]")
    g("s_waitcnt lgkmcnt(0)")
    g("s_barrier")
    g("s_cmp_ge_u32 s26, 2")
    g("s_cbranch_scc1 L_end1")
    g("v_lshlrev_b32 v20, 2, v0")
    g(f"v_mov_b32 v21, {W*512}")
    OB = 48
    MB = 48 + W + (W % 2)
    for w in range(W):
        g(f"ds_read_b32 v{OB+w}, v20 offset:{w*512}")
    for w in range(W):
        g(f"ds_read_b64 v[{MB+2*w}:{MB+2*w+1}], v21 offset:{w*8}")
    assert MB + 2 * W <= nv
    g("s_waitcnt lgkmcnt(0)")
    g(f"v_mov_b32 v22, v{MB}")
    for w in range(1, W):
        g(f"v_max_f32 v22, v22, v{MB+2*w}")
    g("v_mov_b32 v24, 0")
    g("v_mov_b32 v23, 0")
    for w in range(W):
        g(f"v_sub_f32 v25, v{MB+2*w}, v22")
        g("v_exp_f32 v25, v25")
        g("s_nop 0")
        g(f"v_fmac_f32 v24, v25, v{OB+w}")
        g(f"v_fmac_f32 v23, v25, v{MB+2*w+1}")
    g(f"s_mul_i32 s27, s24, {S}")
    g("s_add_u32 s27, s27, s25")
    g(f"s_mul_i32 s27, s27, {PART}")
    g("s_add_u32 s10, s10, s27")
    g("s_addc_u32 s11, s11, 0")
    g("global_store_dword v20, v24, s[10:11]")
    g("v_cmp_eq_u32 vcc, 0, v0")
    g("s_and_saveexec_b64 s[32:33], vcc")
    g("s_cbranch_execz L_end1")
    g("global_store_dwordx2 v20, v[22:23], s[10:11] offset:512")
    g.label("L_end1")
    g("s_endpgm")
    if not nocompute:
        for st in range(D):
            g.label(f"L_upd{st}")
            g(f"v_mov_b32 v{vTmp}, v{vT}")
            g("s_nop 1")
            g(f"v_max_f32_dpp v{vTmp}, v{vTmp}, v{vTmp} row_ror:4 row_mask:0xf bank_mask:0xf")
            g("s_nop 1")
            g(f"v_max_f32_dpp v{vTmp}, v{vTmp}, v{vTmp} row_ror:8 row_mask:0xf bank_mask:0xf")
            g(f"v_mov_b32 v{vTmp2}, v{vTmp}")
            g("s_nop 1")
            g(f"v_permlane16_swap_b32 v{vTmp}, v{vTmp2}")
            g("s_nop 1")
            g(f"v_max_f32 v{vTmp}, v{vTmp}, v{vTmp2}")
            g(f"v_mov_b32 v{vTmp2}, v{vTmp}")
            g("s_nop 1")
            g(f"v_permlane32_swap_b32 v{vTmp}, v{vTmp2}")
            g("s_nop 1")
            g(f"v_max3_f32 v{vM}, v{vTmp}, v{vTmp2}, v{vM}")
            g(f"v_mul_f32 v{vTmp}, s22, v{vM}")
            g(f"v_sub_f32 v{vTmp2}, v{vMC}, v{vTmp}")
            g(f"v_exp_f32 v{vTmp2}, v{vTmp2}")
            g(f"v_mov_b32 v{vMC}, v{vTmp}")
            g(f"v_mul_f32 v{vL}, v{vL}, v{vTmp2}")
            for j in range(4):
                g(f"v_mul_f32 v{DO+j}, v{DO+j}, v{vTmp2}")
            g(f"s_branch L_back{st}")

    g.raw(f".globl {k2}")
    g.raw(".p2align 8")
    g.raw(f".type {k2},@function")
    g.label(k2)
    g(f"s_cmp_ge_u32 s2, {HEADS}")
    g("s_cbranch_scc1 L_end2")
    g("s_load_dwordx2 s[4:5], s[0:1], 24")
    g("s_load_dwordx2 s[6:7], s[0:1], 40")
    g(f"s_mul_i32 s8, s2, {S*PART}")
    g("s_lshl_b32 s9, s2, 8")
    g("v_lshlrev_b32 v1, 3, v0")
    g("v_lshlrev_b32 v2, 2, v0")
    g("v_mov_b32 v3, 512")
    g("s_waitcnt lgkmcnt(0)")
    g("s_add_u32 s6, s6, s8")
    g("s_addc_u32 s7, s7, 0")
    g("s_add_u32 s4, s4, s9")
    g("s_addc_u32 s5, s5, 0")
    OB2, MB2 = 8, 8 + 2 * S
    for s in range(S):
        if s and (s % 4 == 0):
            g(f"s_add_u32 s6, s6, {4*PART}")
            g("s_addc_u32 s7, s7, 0")
        off = (s % 4) * PART
        g(f"global_load_dwordx2 v[{OB2+2*s}:{OB2+2*s+1}], v1, s[6:7] offset:{off}")
        g(f"global_load_dwordx2 v[{MB2+2*s}:{MB2+2*s+1}], v3, s[6:7] offset:{off}")
    g("s_waitcnt vmcnt(0)")
    g(f"v_mov_b32 v4, v{MB2}")
    for s in range(1, S):
        g(f"v_max_f32 v4, v4, v{MB2+2*s}")
    g("v_mov_b32 v5, 0")
    g("v_mov_b32 v6, 0")
    g("v_mov_b32 v7, 0")
    for s in range(S):
        g(f"v_sub_f32 v3, v{MB2+2*s}, v4")
        g("v_exp_f32 v3, v3")
        g("s_nop 0")
        g(f"v_fmac_f32 v5, v3, v{OB2+2*s}")
        g(f"v_fmac_f32 v6, v3, v{OB2+2*s+1}")
        g(f"v_fmac_f32 v7, v3, v{MB2+2*s+1}")
    g("v_rcp_f32 v7, v7")
    g("s_nop 0")
    g("v_mul_f32 v5, v5, v7")
    g("v_mul_f32 v6, v6, v7")
    g("v_cvt_pk_bf16_f32 v5, v5, v6")
    g("global_store_dword v2, v5, s[4:5]")
    g.label("L_end2")
    g("s_endpgm")
    g.raw('.section .rodata,"a"')
    g.raw(".p2align 6")
    g.raw(kd(k1, nv, 40))
    g.raw(".p2align 6")
    g.raw(kd(k2, MB2 + 2 * S, 16))
    return g.text()


if __name__ == "__main__":
    ap = argparse.ArgumentParser()
    ap.add_argument("-S", type=int, default=2)
    ap.add_argument("-W", type=int, default=8)
    ap.add_argument("-D", type=int, default=6)
    ap.add_argument("--kflags", default="nt")
    ap.add_argument("--vflags", default="nt")
    ap.add_argument("--lds_pad", type=int, default=0)
    ap.add_argument("--wmap", default="inter")
    ap.add_argument("--hmap", default="hs")
    ap.add_argument("--nocompute", action="store_true")
    ap.add_argument("--minvgpr", type=int, default=0)
    ap.add_argument("-o", default="/dev/stdout")
    a = ap.parse_args()
    txt = gen(a.S, a.W, a.D, a.kflags, a.vflags, a.lds_pad, a.wmap, a.hmap, a.nocompute, a.minvgpr)
    open(a.o, "w").write(txt)
```

```python
import argparse, struct, math

NAME = "standalone__softmax_full_bidir__decode"
HEADS = 128
SKV = 16384
HEAD_BYTES = SKV * 256
CONST_C = (128 ** -0.5) * math.log2(math.e)


def f32bits(x):
    return struct.unpack("<I", struct.pack("<f", x))[0]


HEADER = """; Kernarg layout for this problem (48 bytes, ptrs only, base s[0:1]):
"""


class Gen:
    def __init__(self):
        self.lines = []

    def __call__(self, s):
        self.lines.append("    " + s)

    def label(self, s):
        self.lines.append(s + ":")

    def raw(self, s):
        self.lines.append(s)

    def text(self):
        return "\n".join(self.lines) + "\n"


def kd(name, vgpr, sgpr):
    acc = (vgpr + 3) // 4 * 4
    return f""".amdhsa_kernel {name}
  .amdhsa_next_free_vgpr {vgpr}
  .amdhsa_next_free_sgpr {sgpr}
  .amdhsa_accum_offset {acc}
  .amdhsa_group_segment_fixed_size 0
  .amdhsa_kernarg_size 48
  .amdhsa_user_sgpr_count 2
  .amdhsa_user_sgpr_kernarg_segment_ptr 1
  .amdhsa_system_sgpr_workgroup_id_x 1
.end_amdhsa_kernel
"""


def gen(S=2, W=8, D=6, kflags="nt", vflags="nt", lds_pad=0, wmap="inter", hmap="hs",
        nocompute=False, minvgpr=0, stamp=False):
    g = Gen()
    NWG = HEADS * S
    chunk = HEAD_BYTES // S
    T = chunk // (4096 * W)
    assert T * 4096 * W == chunk and T >= D
    lds_bytes = max(W * 512 + W * 8, lds_pad)
    k1 = NAME + "_kernel"
    k2 = "combine_kernel"
    PART = 1024

    vKoff, vVoff, vM, vMC, vL, vT, vP, vPK, vTmp, vTmp2 = 1, 2, 3, 4, 5, 6, 7, 8, 9, 10
    DS, DO, BP0, BP1, MASK, BQ, BUF = 12, 16, 20, 24, 28, 32, 48
    nv = max(BUF + 32 * D, minvgpr)

    def r4(b):
        return f"v[{b}:{b+3}]"

    def kreg(st, n):
        return BUF + 32 * st + 4 * n

    def vreg(st, n):
        return BUF + 32 * st + 16 + 4 * n

    g.raw(HEADER.rstrip("\n"))
    g.raw(f"; @launch kernel={k1} grid=({NWG},1,1) block=({64*W},1,1) lds={lds_bytes}")
    g.raw(f"; @launch kernel={k2} grid=({HEADS},1,1) block=(64,1,1) lds=0")
    g.raw('.amdgcn_target "amdgcn-amd-amdhsa--gfx950"')
    g.raw(".text")
    g.raw(f".globl {k1}")
    g.raw(".p2align 8")
    g.raw(f".type {k1},@function")
    g.label(k1)
    g(f"s_cmp_ge_u32 s2, {NWG}")
    g("s_cbranch_scc1 L_end1")
    if stamp:
        g("s_memrealtime s[36:37]")
    g("s_load_dwordx4 s[4:7], s[0:1], 0")
    g("s_load_dwordx2 s[8:9], s[0:1], 16")
    g("s_load_dwordx2 s[10:11], s[0:1], 40")
    if hmap == "hs":
        g(f"s_lshr_b32 s24, s2, {int(math.log2(S))}")
        g(f"s_and_b32 s25, s2, {S-1}")
    else:
        g(f"s_and_b32 s24, s2, {HEADS-1}")
        g(f"s_lshr_b32 s25, s2, 7")
    g("v_and_b32 v11, 63, v0")
    g("v_lshrrev_b32 v12, 6, v0")
    g("v_and_b32 v13, 15, v11")
    g("v_lshrrev_b32 v14, 4, v11")
    g("v_readfirstlane_b32 s26, v12")
    if wmap == "inter":
        g("v_lshlrev_b32 v15, 12, v12")
        step = 4096 * W
    else:
        g(f"v_mul_u32_u24 v15, {T*4096}, v12")
        step = 4096
    g("v_lshrrev_b32 v16, 2, v13")
    g("v_lshlrev_b32 v16, 8, v16")
    g("v_and_b32 v17, 3, v13")
    g("v_lshlrev_b32 v17, 4, v17")
    g("v_lshlrev_b32 v18, 6, v14")
    g("v_add_u32 v17, v17, v18")
    g(f"v_add3_u32 v{vKoff}, v16, v17, v15")
    g("v_lshlrev_b32 v16, 4, v11")
    g(f"v_add_u32 v{vVoff}, v16, v15")
    g("s_lshl_b32 s27, s24, 22")
    g("s_lshr_b32 s28, s24, 10")
    g(f"s_mul_i32 s29, s25, {chunk}")
    g("s_add_u32 s27, s27, s29")
    g("s_addc_u32 s28, s28, 0")
    g("s_lshl_b32 s30, s24, 8")
    g("s_waitcnt lgkmcnt(0)")
    g("s_add_u32 s12, s6, s27")
    g("s_addc_u32 s13, s7, s28")
    g("s_and_b32 s13, s13, 0xffff")
    g(f"s_mov_b32 s14, {chunk}")
    g("s_mov_b32 s15, 0x00020000")
    g("s_add_u32 s16, s8, s27")
    g("s_addc_u32 s17, s9, s28")
    g("s_and_b32 s17, s17, 0xffff")
    g(f"s_mov_b32 s18, {chunk}")
    g("s_mov_b32 s19, 0x00020000")
    g("s_add_u32 s4, s4, s30")
    g("s_addc_u32 s5, s5, 0")
    g(f"global_load_dwordx4 v[20:23], v17, s[4:5]")
    g("s_mov_b32 s20, 0")
    kf = (" " + kflags) if kflags else ""
    vf = (" " + vflags) if vflags else ""

    def loadK(st):
        for n in range(4):
            g(f"buffer_load_dwordx4 {r4(kreg(st,n))}, v{vKoff}, s[12:15], s20 offen offset:{n*1024}{kf}")

    def loadV(st):
        for n in range(4):
            g(f"buffer_load_dwordx4 {r4(vreg(st,n))}, v{vVoff}, s[16:19], s20 offen offset:{n*1024}{vf}")

    for st in range(D):
        loadK(st)
        loadV(st)
        g(f"s_add_u32 s20, s20, {step}")
    g(f"s_mov_b32 s22, 0x{f32bits(CONST_C):08x}")
    g(f"s_mov_b32 s21, {T}")
    g(f"v_mov_b32 v{vM}, 0xff800000")
    g(f"v_mov_b32 v{vMC}, 0xff800000")
    g(f"v_mov_b32 v{vL}, 0")
    g("v_mov_b32 v24, 0xffff")
    g("v_mov_b32 v25, 0xffff0000")
    for j in range(4):
        g(f"v_cmp_eq_u32 vcc, {2*j}, v13")
        g(f"v_cmp_eq_u32 s[32:33], {2*j+1}, v13")
        g("s_nop 1")
        g(f"v_cndmask_b32 v{MASK+j}, 0, v24, vcc")
        g(f"v_cndmask_b32 v{MASK+j}, v{MASK+j}, v25, s[32:33]")
    g("v_lshrrev_b32 v26, 2, v13")
    g(f"s_waitcnt vmcnt({min(8*D,63)})" if 8 * D <= 63 else "s_waitcnt vmcnt(63)")
    assert 8 * D <= 63
    for n in range(4):
        g(f"v_cmp_eq_u32 vcc, {n}, v26")
        g("s_nop 1")
        for j in range(4):
            g(f"v_cndmask_b32 v{BQ+4*n+j}, 0, v{20+j}, vcc")
    for j in range(4):
        g(f"v_mov_b32 v{DO+j}, 0")
    g("s_nop 1")

    NW = 8 * D - 4
    if stamp:
        g("v_mov_b32 v11, 0")
        g("s_mov_b32 s43, 0")
    g.raw(".p2align 3")
    g.label("L_loop")
    if stamp:
        g("s_memrealtime s[38:39]")
        g("s_waitcnt lgkmcnt(0)")
        g("s_mov_b32 m0, s43")
        g("s_nop 1")
        g("v_writelane_b32 v11, s38, m0")
        g("s_add_u32 s43, s43, 1")
    for st in range(D):
        g(f"s_cmp_gt_u32 s21, {D}")
        g(f"s_cselect_b32 s14, {chunk}, 0")
        g(f"s_cselect_b32 s18, {chunk}, 0")
        g(f"s_waitcnt vmcnt({NW})")
        if not nocompute:
            for n in range(4):
                c = "0" if n == 0 else r4(DS)
                g(f"v_mfma_f32_16x16x32_bf16 {r4(DS)}, {r4(kreg(st,n))}, {r4(BQ+4*n)}, {c}")
        loadK(st)
        if not nocompute:
            g("s_nop 3")
            g(f"v_mov_b32_dpp v{vT}, v{DS} quad_perm:[0,0,0,0] row_mask:0xf bank_mask:0xf")
            g(f"v_mov_b32_dpp v{vTmp}, v{DS+2} quad_perm:[2,2,2,2] row_mask:0xf bank_mask:0xf")
            g("s_nop 0")
            g(f"v_add_f32_dpp v{vT}, v{DS+1}, v{vT} quad_perm:[1,1,1,1] row_mask:0xf bank_mask:0xf")
            g(f"v_add_f32_dpp v{vTmp}, v{DS+3}, v{vTmp} quad_perm:[3,3,3,3] row_mask:0xf bank_mask:0xf")
            g(f"v_add_f32 v{vT}, v{vT}, v{vTmp}")
            g(f"v_cmp_gt_f32 vcc, v{vT}, v{vM}")
            g(f"s_cbranch_vccnz L_upd{st}")
            g.label(f"L_back{st}")
            g(f"v_fma_f32 v{vP}, v{vT}, s22, -v{vMC}")
            g(f"v_exp_f32 v{vP}, v{vP}")
            g("s_nop 0")
            g(f"v_cvt_pk_bf16_f32 v{vPK}, v{vP}, v{vP}")
            g(f"v_add_f32 v{vL}, v{vL}, v{vP}")
        g(f"s_waitcnt vmcnt({NW})")
        if not nocompute:
            for n in range(4):
                bp = BP0 if n % 2 == 0 else BP1
                for j in range(4):
                    g(f"v_and_b32_dpp v{bp+j}, v{vPK}, v{MASK+j} row_newbcast:{4*n} row_mask:0xf bank_mask:0xf")
                if n > 0:
                    pb = BP0 if (n - 1) % 2 == 0 else BP1
                    g(f"v_mfma_f32_16x16x32_bf16 {r4(DO)}, {r4(vreg(st,n-1))}, {r4(pb)}, {r4(DO)}")
            g("s_nop 1")
            g(f"v_mfma_f32_16x16x32_bf16 {r4(DO)}, {r4(vreg(st,3))}, {r4(BP1)}, {r4(DO)}")
        loadV(st)
        g(f"s_add_u32 s20, s20, {step}")
        g("s_sub_u32 s21, s21, 1")
        g("s_cmp_eq_u32 s21, 0")
        if st < D - 1:
            g("s_cbranch_scc1 L_done")
        else:
            g("s_cbranch_scc0 L_loop")
    g.label("L_done")
    g("s_waitcnt vmcnt(0)")
    if stamp:
        g("s_memrealtime s[38:39]")
        g("s_getreg_b32 s40, hwreg(HW_REG_XCC_ID)")
        g("s_getreg_b32 s41, hwreg(HW_REG_HW_ID)")
        g(f"s_mul_i32 s42, s2, {W}")
        g("s_add_u32 s42, s42, s26")
        g("s_lshl_b32 s42, s42, 5")
        g("s_add_u32 s42, s42, 0x1000000")
        g("s_waitcnt lgkmcnt(0)")
        g("v_mov_b32 v48, s36")
        g("v_mov_b32 v49, s37")
        g("v_mov_b32 v50, s38")
        g("v_mov_b32 v51, s39")
        g("v_mov_b32 v52, s40")
        g("v_mov_b32 v53, s41")
        g("v_mov_b32 v54, s42")
        g("global_store_dwordx4 v54, v[48:51], s[10:11]")
        g("global_store_dwordx2 v54, v[52:53], s[10:11] offset:16")
        g("s_lshl_b32 s42, s42, 3")
        g("v_and_b32 v55, 63, v0")
        g("v_lshlrev_b32 v55, 2, v55")
        g("v_add_u32 v55, s42, v55")
        g("global_store_dword v55, v11, s[10:11]")
        g("s_waitcnt vmcnt(0)")
    g("v_and_b32 v11, 63, v0")
    g("v_and_b32 v13, 15, v11")
    g("v_lshrrev_b32 v14, 4, v11")
    g("s_nop 1")
    g(f"v_add_f32_dpp v{vL}, v{vL}, v{vL} row_ror:4 row_mask:0xf bank_mask:0xf")
    g("s_nop 1")
    g(f"v_add_f32_dpp v{vL}, v{vL}, v{vL} row_ror:8 row_mask:0xf bank_mask:0xf")
    g(f"v_mov_b32 v{vTmp}, v{vL}")
    g("s_nop 1")
    g(f"v_permlane16_swap_b32 v{vL}, v{vTmp}")
    g("s_nop 1")
    g(f"v_add_f32 v{vL}, v{vL}, v{vTmp}")
    g(f"v_mov_b32 v{vTmp}, v{vL}")
    g("s_nop 1")
    g(f"v_permlane32_swap_b32 v{vL}, v{vTmp}")
    g("s_nop 1")
    g(f"v_add_f32 v{vL}, v{vL}, v{vTmp}")
    g("s_lshl_b32 s27, s26, 9")
    g("v_lshlrev_b32 v20, 7, v14")
    g("v_lshlrev_b32 v21, 2, v13")
    g("v_add3_u32 v20, v20, v21, s27")
    g("s_lshl_b32 s28, s26, 3")
    g(f"s_add_u32 s28, s28, {W*512}")
    g("v_mov_b32 v21, s28")
    g("v_cmp_gt_u32 vcc, 8, v13")
    g("s_and_saveexec_b64 s[32:33], vcc")
    for j in range(4):
        g(f"ds_write_b32 v20, v{DO+j} offset:{j*32}")
    g(f"ds_write_b64 v21, v[{vMC}:{vL}]")
    g("s_mov_b64 exec, s[32:33]")
    g("s_waitcnt lgkmcnt(0)")
    g("s_barrier")
    g("s_cmp_ge_u32 s26, 2")
    g("s_cbranch_scc1 L_end1")
    g("v_lshlrev_b32 v20, 2, v0")
    g(f"v_mov_b32 v21, {W*512}")
    OB = 48
    MB = 48 + W + (W % 2)
    for w in range(W):
        g(f"ds_read_b32 v{OB+w}, v20 offset:{w*512}")
    for w in range(W):
        g(f"ds_read_b64 v[{MB+2*w}:{MB+2*w+1}], v21 offset:{w*8}")
    assert MB + 2 * W <= nv
    g("s_waitcnt lgkmcnt(0)")
    g(f"v_mov_b32 v22, v{MB}")
    for w in range(1, W):
        g(f"v_max_f32 v22, v22, v{MB+2*w}")
    g("v_mov_b32 v24, 0")
    g("v_mov_b32 v23, 0")
    for w in range(W):
        g(f"v_sub_f32 v25, v{MB+2*w}, v22")
        g("v_exp_f32 v25, v25")
        g("s_nop 0")
        g(f"v_fmac_f32 v24, v25, v{OB+w}")
        g(f"v_fmac_f32 v23, v25, v{MB+2*w+1}")
    g(f"s_mul_i32 s27, s24, {S}")
    g("s_add_u32 s27, s27, s25")
    g(f"s_mul_i32 s27, s27, {PART}")
    g("s_add_u32 s10, s10, s27")
    g("s_addc_u32 s11, s11, 0")
    g("global_store_dword v20, v24, s[10:11]")
    g("v_cmp_eq_u32 vcc, 0, v0")
    g("s_and_saveexec_b64 s[32:33], vcc")
    g("s_cbranch_execz L_end1")
    g("global_store_dwordx2 v20, v[22:23], s[10:11] offset:512")
    g.label("L_end1")
    g("s_endpgm")
    if not nocompute:
        for st in range(D):
            g.label(f"L_upd{st}")
            g(f"v_mov_b32 v{vTmp}, v{vT}")
            g("s_nop 1")
            g(f"v_max_f32_dpp v{vTmp}, v{vTmp}, v{vTmp} row_ror:4 row_mask:0xf bank_mask:0xf")
            g("s_nop 1")
            g(f"v_max_f32_dpp v{vTmp}, v{vTmp}, v{vTmp} row_ror:8 row_mask:0xf bank_mask:0xf")
            g(f"v_mov_b32 v{vTmp2}, v{vTmp}")
            g("s_nop 1")
            g(f"v_permlane16_swap_b32 v{vTmp}, v{vTmp2}")
            g("s_nop 1")
            g(f"v_max_f32 v{vTmp}, v{vTmp}, v{vTmp2}")
            g(f"v_mov_b32 v{vTmp2}, v{vTmp}")
            g("s_nop 1")
            g(f"v_permlane32_swap_b32 v{vTmp}, v{vTmp2}")
            g("s_nop 1")
            g(f"v_max3_f32 v{vM}, v{vTmp}, v{vTmp2}, v{vM}")
            g(f"v_mul_f32 v{vTmp}, s22, v{vM}")
            g(f"v_sub_f32 v{vTmp2}, v{vMC}, v{vTmp}")
            g(f"v_exp_f32 v{vTmp2}, v{vTmp2}")
            g(f"v_mov_b32 v{vMC}, v{vTmp}")
            g(f"v_mul_f32 v{vL}, v{vL}, v{vTmp2}")
            for j in range(4):
                g(f"v_mul_f32 v{DO+j}, v{DO+j}, v{vTmp2}")
            g(f"s_branch L_back{st}")

    g.raw(f".globl {k2}")
    g.raw(".p2align 8")
    g.raw(f".type {k2},@function")
    g.label(k2)
    g(f"s_cmp_ge_u32 s2, {HEADS}")
    g("s_cbranch_scc1 L_end2")
    g("s_load_dwordx2 s[4:5], s[0:1], 24")
    g("s_load_dwordx2 s[6:7], s[0:1], 40")
    g(f"s_mul_i32 s8, s2, {S*PART}")
    g("s_lshl_b32 s9, s2, 8")
    g("v_lshlrev_b32 v1, 3, v0")
    g("v_lshlrev_b32 v2, 2, v0")
    g("v_mov_b32 v3, 512")
    g("s_waitcnt lgkmcnt(0)")
    g("s_add_u32 s6, s6, s8")
    g("s_addc_u32 s7, s7, 0")
    g("s_add_u32 s4, s4, s9")
    g("s_addc_u32 s5, s5, 0")
    OB2, MB2 = 8, 8 + 2 * S
    for s in range(S):
        if s and (s % 4 == 0):
            g(f"s_add_u32 s6, s6, {4*PART}")
            g("s_addc_u32 s7, s7, 0")
        off = (s % 4) * PART
        g(f"global_load_dwordx2 v[{OB2+2*s}:{OB2+2*s+1}], v1, s[6:7] offset:{off}")
        g(f"global_load_dwordx2 v[{MB2+2*s}:{MB2+2*s+1}], v3, s[6:7] offset:{off}")
    g("s_waitcnt vmcnt(0)")
    g(f"v_mov_b32 v4, v{MB2}")
    for s in range(1, S):
        g(f"v_max_f32 v4, v4, v{MB2+2*s}")
    g("v_mov_b32 v5, 0")
    g("v_mov_b32 v6, 0")
    g("v_mov_b32 v7, 0")
    for s in range(S):
        g(f"v_sub_f32 v3, v{MB2+2*s}, v4")
        g("v_exp_f32 v3, v3")
        g("s_nop 0")
        g(f"v_fmac_f32 v5, v3, v{OB2+2*s}")
        g(f"v_fmac_f32 v6, v3, v{OB2+2*s+1}")
        g(f"v_fmac_f32 v7, v3, v{MB2+2*s+1}")
    g("v_rcp_f32 v7, v7")
    g("s_nop 0")
    g("v_mul_f32 v5, v5, v7")
    g("v_mul_f32 v6, v6, v7")
    g("v_cvt_pk_bf16_f32 v5, v5, v6")
    g("global_store_dword v2, v5, s[4:5]")
    g.label("L_end2")
    g("s_endpgm")
    g.raw('.section .rodata,"a"')
    g.raw(".p2align 6")
    g.raw(kd(k1, nv, 48))
    g.raw(".p2align 6")
    g.raw(kd(k2, MB2 + 2 * S, 16))
    return g.text()


if __name__ == "__main__":
    ap = argparse.ArgumentParser()
    ap.add_argument("-S", type=int, default=2)
    ap.add_argument("-W", type=int, default=8)
    ap.add_argument("-D", type=int, default=6)
    ap.add_argument("--kflags", default="nt")
    ap.add_argument("--vflags", default="nt")
    ap.add_argument("--lds_pad", type=int, default=0)
    ap.add_argument("--wmap", default="inter")
    ap.add_argument("--hmap", default="hs")
    ap.add_argument("--nocompute", action="store_true")
    ap.add_argument("--minvgpr", type=int, default=0)
    ap.add_argument("--stamp", action="store_true")
    ap.add_argument("-o", default="/dev/stdout")
    a = ap.parse_args()
    txt = gen(a.S, a.W, a.D, a.kflags, a.vflags, a.lds_pad, a.wmap, a.hmap, a.nocompute, a.minvgpr, a.stamp)
    open(a.o, "w").write(txt)
```

```python
import argparse
from gen import Gen, kd, f32bits, HEADER, NAME, CONST_C

DPP = "row_mask:0xf bank_mask:0xf"


def gen(thr=20, thrv=None, thrp=0, fused=True, flags="nt", lds=90000, stamp=False, pair=0):
    g = Gen()
    if thrv is None:
        thrv = thr
    k1 = NAME + "_kernel"
    k2 = "combine_kernel"
    vOff, vVoff, vM, vMC, vL, vT, vP, vLds, vTmp, vTmp2 = 1, 2, 3, 4, 5, 6, 7, 8, 9, 10
    DS, DO, BP0, BP1, MASK, BQ = 12, 16, 20, 24, 28, 32
    vG0, vG1, vPK0, vPK1 = 48, 49, 50, 51
    DS2 = 52
    BUF = 56
    nv = BUF + 128
    NREC = 1 << 21
    wt = " sc0 sc1" if fused else ""

    def r4(b): return f"v[{b}:{b+3}]"
    def breg(st, n): return BUF + 16 * st + 4 * n
    fl = (" " + flags) if flags else ""

    def load(st, t):
        for n in range(4):
            if t: g(f"s_waitcnt vmcnt({t-1})")
            g(f"buffer_load_dwordx4 {r4(breg(st,n))}, v{vOff}, s[16:19], s29 offen offset:{n*1024}{fl}")
        g("s_add_u32 s29, s29, 4096")

    def allreduce(op, v):
        for ror in (1, 2, 4, 8):
            g("s_nop 1")
            g(f"{op}_dpp v{v}, v{v}, v{v} row_ror:{ror} {DPP}")
        for sw in ("16", "32"):
            g(f"v_mov_b32 v{vTmp}, v{v}")
            g("s_nop 1")
            g(f"v_permlane{sw}_swap_b32 v{v}, v{vTmp}")
            g("s_nop 1")
            g(f"{op} v{v}, v{v}, v{vTmp}")

    g.raw(HEADER.rstrip("\n"))
    if fused:
        g.raw(f"; @launch grid=(256,1,1) block=(64,1,1) lds={lds}")
    else:
        g.raw(f"; @launch kernel={k1} grid=(256,1,1) block=(64,1,1) lds={lds}")
        g.raw(f"; @launch kernel={k2} grid=(128,1,1) block=(64,1,1) lds=0")
    g.raw('.amdgcn_target "amdgcn-amd-amdhsa--gfx950"')
    g.raw(".text")
    g.raw(f".globl {k1}")
    g.raw(".p2align 8")
    g.raw(f".type {k1},@function")
    g.label(k1)
    g("s_load_dwordx8 s[4:11], s[0:1], 0")
    g("s_load_dwordx4 s[12:15], s[0:1], 32")
    if stamp:
        g("s_memrealtime s[50:51]")
    g("s_cmp_ge_u32 s2, 256")
    g("s_cbranch_scc1 L_end1")
    g("s_lshr_b32 s24, s2, 1")
    g("v_and_b32 v13, 15, v0")
    g("v_lshrrev_b32 v14, 4, v0")
    g("v_lshrrev_b32 v16, 2, v13")
    g("v_lshlrev_b32 v16, 8, v16")
    g("v_and_b32 v17, 3, v13")
    g("v_lshlrev_b32 v17, 4, v17")
    g("v_lshlrev_b32 v18, 6, v14")
    g("v_add_u32 v17, v17, v18")
    g(f"v_add_u32 v{vOff}, v16, v17")
    g(f"v_lshlrev_b32 v{vVoff}, 4, v0")
    g("s_lshl_b32 s28, s2, 21")
    g("s_mov_b32 s29, 0")
    g("s_lshl_b32 s31, s24, 8")
    g(f"s_mov_b32 s18, {NREC}")
    g("s_mov_b32 s19, 0x00020000")
    g("s_waitcnt lgkmcnt(0)")
    g("s_add_u32 s16, s6, s28")
    g("s_addc_u32 s17, s7, 0")
    g("s_and_b32 s17, s17, 0xffff")
    g("s_add_u32 s4, s4, s31")
    g("s_addc_u32 s5, s5, 0")
    g(f"global_load_dwordx4 {r4(BP0)}, v17, s[4:5]")
    for st in range(5):
        load(st, 0)
    g("s_add_u32 s20, s8, s28")
    g("s_addc_u32 s21, s9, 0")
    g("s_and_b32 s21, s21, 0xffff")
    g(f"s_mov_b32 s30, 0x{f32bits(CONST_C):08x}")
    g("s_add_u32 s10, s10, s31")
    g("s_addc_u32 s11, s11, 0")
    g("s_lshl_b32 s28, s2, 10")
    g("s_add_u32 s32, s14, s28")
    g("s_addc_u32 s33, s15, 0")
    g("s_xor_b32 s28, s28, 1024")
    g("s_add_u32 s34, s14, s28")
    g("s_addc_u32 s35, s15, 0")
    g("s_lshr_b32 s28, s2, 2")
    g("s_lshl_b32 s28, s28, 2")
    g("s_add_u32 s36, s12, s28")
    g("s_addc_u32 s37, s13, 0")
    g("s_and_b32 s38, s24, 1")
    g("s_lshl_b32 s38, s38, 4")
    g("s_mov_b32 s40, 0x00ff00ff")
    g("s_mov_b32 s41, 0x00ff00ff")
    for tt in range(1, 4):
        m = 0x11111111 << tt
        g(f"s_mov_b32 s{40+2*tt}, 0x{m:08x}")
        g(f"s_mov_b32 s{41+2*tt}, 0x{m:08x}")
    g("v_and_b32 v24, 1, v13")
    g("v_lshlrev_b32 v24, 4, v24")
    g("v_mov_b32 v25, 0xffff")
    g("v_lshlrev_b32 v24, v24, v25")
    for j in range(4):
        m = (0x3 << (2 * j)); m |= m << 16
        g(f"s_mov_b32 vcc_lo, 0x{m:08x}")
        g(f"s_mov_b32 vcc_hi, 0x{m:08x}")
        g(f"v_cndmask_b32 v{MASK+j}, 0, v24, vcc")
    g(f"v_mov_b32 v{vM}, 0xff800000")
    g(f"v_mov_b32 v{vL}, 0")
    g(f"v_lshlrev_b32 v{vLds}, 2, v0")
    for j in range(4):
        g(f"v_mov_b32 v{DO+j}, 0")
    g("s_waitcnt vmcnt(20)")
    for n in range(4):
        m = (0xf << (4 * n)); m |= m << 16
        g(f"s_mov_b32 vcc_lo, 0x{m:08x}")
        g(f"s_mov_b32 vcc_hi, 0x{m:08x}")
        for j in range(4):
            g(f"v_cndmask_b32 v{BQ+4*n+j}, 0, v{BP0+j}, vcc")
    for st in range(5, 8):
        load(st, thrp)
    g("s_mov_b32 s26, 64")
    if stamp:
        g("v_mov_b32 v11, 0")
        g("s_mov_b32 s57, 0")

    def prog():
        if stamp:
            g("s_memrealtime s[52:53]")
            g("s_waitcnt lgkmcnt(0)")
            g("s_lshr_b32 s56, s57, 1")
            g("s_mov_b32 m0, s56")
            g("s_nop 1")
            g("v_writelane_b32 v11, s52, m0")
            g("s_add_u32 s57, s57, 1")

    g.raw(".p2align 3")
    g.label("L_loopK")
    prog()
    g("s_cmp_lg_u32 s26, 1")
    g("s_cbranch_scc1 L_k_go")
    g("s_mov_b32 s16, s20")
    g("s_mov_b32 s17, s21")
    g("s_mov_b32 s29, 0")
    g(f"v_mov_b32 v{vOff}, v{vVoff}")
    g.label("L_k_go")
    for st in range(8):
        tt = st % 4
        G = vG0 if st < 4 else vG1
        g("s_waitcnt vmcnt(28)")
        for n in range(4):
            c = "0" if n == 0 else r4(DS)
            g(f"v_mfma_f32_16x16x32_bf16 {r4(DS)}, {r4(breg(st,n))}, {r4(BQ+4*n)}, {c}")
        load(st, thr)
        if not thr:
            g("s_nop 2")
        g(f"v_mov_b32_dpp v{vT}, v{DS} quad_perm:[0,0,0,0] {DPP}")
        g(f"v_mov_b32_dpp v{vTmp}, v{DS+2} quad_perm:[2,2,2,2] {DPP}")
        g("s_nop 0")
        g(f"v_add_f32_dpp v{vT}, v{DS+1}, v{vT} quad_perm:[1,1,1,1] {DPP}")
        g(f"v_add_f32_dpp v{vTmp}, v{DS+3}, v{vTmp} quad_perm:[3,3,3,3] {DPP}")
        if tt == 0:
            g(f"v_add_f32 v{G}, v{vT}, v{vTmp}")
        else:
            g(f"v_add_f32 v{vT}, v{vT}, v{vTmp}")
            g(f"v_cndmask_b32 v{G}, v{G}, v{vT}, s[{40+2*tt}:{41+2*tt}]")
        if tt == 3:
            g(f"v_max_f32 v{vM}, v{vM}, v{G}")
            g(f"ds_write_b32 v{vLds}, v{G} offset:{256*(st//4)}")
    g(f"v_add_u32 v{vLds}, 512, v{vLds}")
    g("s_sub_u32 s26, s26, 1")
    g("s_cmp_lg_u32 s26, 0")
    g("s_cbranch_scc1 L_loopK")
    g(f"v_lshlrev_b32 v{vLds}, 2, v0")
    g(f"ds_read_b32 v{vG0}, v{vLds}")
    g(f"ds_read_b32 v{vG1}, v{vLds} offset:256")
    allreduce("v_max_f32", vM)
    g(f"v_mul_f32 v{vMC}, s30, v{vM}")
    g("s_mov_b32 s26, 64")
    g.raw(".p2align 3")
    g.label("L_loopV")
    prog()
    g("s_cmp_lg_u32 s26, 1")
    g(f"s_cselect_b32 s18, {NREC}, 0")
    g(f"v_add_u32 v{vLds}, 512, v{vLds}")
    g("s_waitcnt lgkmcnt(0)")
    g(f"v_fma_f32 v{vT}, v{vG0}, s30, -v{vMC}")
    g(f"v_fma_f32 v{vP}, v{vG1}, s30, -v{vMC}")
    g(f"v_exp_f32 v{vT}, v{vT}")
    g(f"v_exp_f32 v{vP}, v{vP}")
    g(f"ds_read_b32 v{vG0}, v{vLds}")
    g(f"ds_read_b32 v{vG1}, v{vLds} offset:256")
    g(f"v_cvt_pk_bf16_f32 v{vPK0}, v{vT}, v{vT}")
    g(f"v_cvt_pk_bf16_f32 v{vPK1}, v{vP}, v{vP}")
    g(f"v_add_f32 v{vL}, v{vL}, v{vT}")
    g(f"v_add_f32 v{vL}, v{vL}, v{vP}")
    for st in range(8):
        tt = st % 4
        PK = vPK0 if st < 4 else vPK1
        for n in range(4):
            bp = BP0 if n % 2 == 0 else BP1
            for j in range(4):
                g(f"v_and_b32_dpp v{bp+j}, v{PK}, v{MASK+j} row_newbcast:{4*n+tt} {DPP}")
            if n == 1:
                g("s_waitcnt vmcnt(28)")
            if n > 0:
                pb = BP0 if (n - 1) % 2 == 0 else BP1
                g(f"v_mfma_f32_16x16x32_bf16 {r4(DO)}, {r4(breg(st,n-1))}, {r4(pb)}, {r4(DO)}")
        g("s_nop 0")
        g(f"v_mfma_f32_16x16x32_bf16 {r4(DO)}, {r4(breg(st,3))}, {r4(BP1)}, {r4(DO)}")
        load(st, thrv)
    g("s_sub_u32 s26, s26, 1")
    g("s_cmp_lg_u32 s26, 0")
    g("s_cbranch_scc1 L_loopV")
    if stamp:
        g("s_memrealtime s[52:53]")
    allreduce("v_add_f32", vL)
    for j in range(4):
        src = vMC if j % 2 == 0 else vL
        g(f"v_cndmask_b32 v{BP0+j}, v{src}, v{DO+j}, s[40:41]")
    g(f"global_store_dwordx4 v{vVoff}, {r4(BP0)}, s[32:33]{wt}")
    if stamp:
        g("s_waitcnt vmcnt(0)")
        g("s_getreg_b32 s54, hwreg(HW_REG_XCC_ID)")
        g("s_lshl_b32 s56, s2, 5")
        g("s_add_u32 s56, s56, 0x1000000")
        g("s_waitcnt lgkmcnt(0)")
        for i, sr in enumerate([50, 51, 52, 53, 54, 57, 56]):
            g(f"v_mov_b32 v{64+i}, s{sr}")
        g("global_store_dwordx4 v70, v[64:67], s[14:15]")
        g("global_store_dwordx2 v70, v[68:69], s[14:15] offset:16")
        g("s_lshl_b32 s56, s56, 3")
        g("v_lshlrev_b32 v71, 2, v0")
        g("v_add_u32 v71, s56, v71")
        g("global_store_dword v71, v11, s[14:15]")

    def combine2(ra, rb, acc):
        g(f"v_max_f32 v12, v{ra}, v{rb}")
        g(f"v_sub_f32 v14, v{ra}, v12")
        g(f"v_sub_f32 v15, v{rb}, v12")
        g("v_exp_f32 v14, v14")
        g("v_exp_f32 v15, v15")
        g("s_nop 1")
        for j in range(4):
            g(f"v_mul_f32_dpp v{acc+j}, v14, v{ra+j} row_newbcast:8 {DPP}")
        for j in range(4):
            g(f"v_fmac_f32_dpp v{acc+j}, v15, v{rb+j} row_newbcast:8 {DPP}")
        g(f"v_rcp_f32 v12, v{acc+1}")
        g("s_nop 1")
        for j in range(4):
            g(f"v_mul_f32_dpp v{acc+j}, v12, v{acc+j} row_newbcast:8 {DPP}")
        for j in range(4):
            g(f"v_cvt_pk_bf16_f32 v{acc+j}, v{acc+j}, v{acc+j}")

    def outaddr():
        g("v_and_b32 v13, 15, v0")
        g("v_lshrrev_b32 v14, 4, v0")
        g("v_lshlrev_b32 v14, 6, v14")
        g("v_lshlrev_b32 v13, 1, v13")
        g("v_add_u32 v13, v13, v14")

    if fused:
        g("s_lshl_b32 s28, 1, s38")
        outaddr()
        g("s_waitcnt vmcnt(0) lgkmcnt(0)")
        g("s_atomic_add s28, s[36:37], 0x0 glc")
        g("s_waitcnt lgkmcnt(0)")
        g("s_lshr_b32 s28, s28, s38")
        g("s_and_b32 s28, s28, 0xffff")
        g("s_cmp_lg_u32 s28, 1")
        g("s_cbranch_scc1 L_end1")
        g(f"global_load_dwordx4 {r4(BP1)}, v{vVoff}, s[34:35] sc0 sc1")
        g("s_waitcnt vmcnt(0)")
        combine2(BP0, BP1, 32)
        g("s_mov_b64 exec, s[40:41]")
        for j in range(4):
            g(f"global_store_short v13, v{32+j}, s[10:11] offset:{16*j}")
    g.label("L_end1")
    g("s_endpgm")
    if not fused:
        g.raw(f".globl {k2}")
        g.raw(".p2align 8")
        g.raw(f".type {k2},@function")
        g.label(k2)
        g("s_load_dwordx2 s[4:5], s[0:1], 24")
        g("s_load_dwordx2 s[6:7], s[0:1], 40")
        g("s_cmp_ge_u32 s2, 128")
        g("s_cbranch_scc1 L_end2")
        g("s_lshl_b32 s8, s2, 11")
        g("s_lshl_b32 s9, s2, 8")
        g("v_lshlrev_b32 v2, 4, v0")
        outaddr()
        g("s_mov_b32 s10, 0x00ff00ff")
        g("s_mov_b32 s11, 0x00ff00ff")
        g("s_waitcnt lgkmcnt(0)")
        g("s_add_u32 s6, s6, s8")
        g("s_addc_u32 s7, s7, 0")
        g("s_add_u32 s4, s4, s9")
        g("s_addc_u32 s5, s5, 0")
        g(f"global_load_dwordx4 {r4(20)}, v2, s[6:7]")
        g(f"global_load_dwordx4 {r4(24)}, v2, s[6:7] offset:1024")
        g("s_waitcnt vmcnt(0)")
        combine2(20, 24, 32)
        g("s_mov_b64 exec, s[10:11]")
        for j in range(4):
            g(f"global_store_short v13, v{32+j}, s[4:5] offset:{16*j}")
        g.label("L_end2")
        g("s_endpgm")
    g.raw('.section .rodata,"a"')
    g.raw(".p2align 6")
    g.raw(kd(k1, nv, 64))
    if not fused:
        g.raw(".p2align 6")
        g.raw(kd(k2, 40, 16))
    return g.text()


if __name__ == "__main__":
    ap = argparse.ArgumentParser()
    ap.add_argument("--thr", type=int, default=20)
    ap.add_argument("--thrv", type=int, default=None)
    ap.add_argument("--thrp", type=int, default=0)
    ap.add_argument("--unfused", action="store_true")
    ap.add_argument("--flags", default="nt")
    ap.add_argument("--lds", type=int, default=90000)
    ap.add_argument("--stamp", action="store_true")
    ap.add_argument("-o", default="/dev/stdout")
    a = ap.parse_args()
    open(a.o, "w").write(gen(a.thr, a.thrv, a.thrp, not a.unfused, a.flags, a.lds, a.stamp))
```

```python
import argparse
from gen import Gen, kd, f32bits, HEADER, NAME, CONST_C

DPP = "row_mask:0xf bank_mask:0xf"


def gen(thrs=((20, 20, 20, 20),), inter=True, endn=0, endthr=28, fast=False, flags="nt", lds=90000,
        stamp=False, vatom=True):
    g = Gen()
    k1 = NAME + "_kernel"
    vOff, vVoff, vM, vMC, vL, vT, vP, vLds, vTmp, vTmp2 = 1, 2, 3, 4, 5, 6, 7, 8, 9, 10
    DS, DO, BP0, BP1, MASK, BQ = 12, 16, 20, 24, 28, 32
    vG, vPK = 48, 50
    PR = 52
    BUF = 56
    nv = BUF + 128
    NREC = 1 << 21

    def r4(b): return f"v[{b}:{b+3}]"
    def breg(st, n): return BUF + 16 * st + 4 * n
    fl = (" " + flags) if flags else ""

    def load1(st, n, t):
        if t: g(f"s_waitcnt vmcnt({t-1})")
        g(f"buffer_load_dwordx4 {r4(breg(st,n))}, v{vOff}, s[16:19], s29 offen offset:{n*1024}{fl}")
        if n == 3:
            g("s_add_u32 s29, s29, 4096")

    def allreduce(op, v):
        for ror in (1, 2, 4, 8):
            g("s_nop 1")
            g(f"{op}_dpp v{v}, v{v}, v{v} row_ror:{ror} {DPP}")
        for sw in ("16", "32"):
            g(f"v_mov_b32 v{vTmp}, v{v}")
            g("s_nop 1")
            g(f"v_permlane{sw}_swap_b32 v{v}, v{vTmp}")
            g("s_nop 1")
            g(f"{op} v{v}, v{v}, v{vTmp}")

    g.raw(HEADER.rstrip("\n"))
    g.raw(f"; @launch grid=(256,1,1) block=(64,1,1) lds={lds}")
    g.raw('.amdgcn_target "amdgcn-amd-amdhsa--gfx950"')
    g.raw(".text")
    g.raw(f".globl {k1}")
    g.raw(".p2align 8")
    g.raw(f".type {k1},@function")
    g.label(k1)
    g("s_load_dwordx8 s[4:11], s[0:1], 0")
    g("s_load_dwordx4 s[12:15], s[0:1], 32")
    if stamp:
        g("s_memrealtime s[50:51]")
    g("s_cmp_ge_u32 s2, 256")
    g("s_cbranch_scc1 L_end1")
    g("s_lshr_b32 s24, s2, 1")
    g("v_and_b32 v13, 15, v0")
    g("v_lshrrev_b32 v14, 4, v0")
    g("v_lshrrev_b32 v16, 2, v13")
    g("v_lshlrev_b32 v16, 8, v16")
    g("v_and_b32 v17, 3, v13")
    g("v_lshlrev_b32 v17, 4, v17")
    g("v_lshlrev_b32 v18, 6, v14")
    g("v_add_u32 v17, v17, v18")
    g(f"v_add_u32 v{vOff}, v16, v17")
    g(f"v_lshlrev_b32 v{vVoff}, 4, v0")
    g("s_lshl_b32 s28, s2, 21")
    g("s_mov_b32 s29, 0")
    g("s_lshl_b32 s31, s24, 8")
    g(f"s_mov_b32 s18, {NREC}")
    g("s_mov_b32 s19, 0x00020000")
    g("s_waitcnt lgkmcnt(0)")
    g("s_add_u32 s16, s6, s28")
    g("s_addc_u32 s17, s7, 0")
    g("s_and_b32 s17, s17, 0xffff")
    g("s_add_u32 s4, s4, s31")
    g("s_addc_u32 s5, s5, 0")
    g(f"global_load_dwordx4 {r4(BP0)}, v17, s[4:5]")
    for st in range(5):
        for n in range(4):
            load1(st, n, 0)
    g("s_add_u32 s20, s8, s28")
    g("s_addc_u32 s21, s9, 0")
    g("s_and_b32 s21, s21, 0xffff")
    g(f"s_mov_b32 s30, 0x{f32bits(CONST_C):08x}")
    g("s_add_u32 s10, s10, s31")
    g("s_addc_u32 s11, s11, 0")
    g("s_lshl_b32 s28, s2, 10")
    g("s_add_u32 s32, s14, s28")
    g("s_addc_u32 s33, s15, 0")
    g("s_xor_b32 s28, s28, 1024")
    g("s_add_u32 s34, s14, s28")
    g("s_addc_u32 s35, s15, 0")
    g("s_lshr_b32 s28, s2, 2")
    g("s_lshl_b32 s28, s28, 2")
    g("s_add_u32 s36, s12, s28")
    g("s_addc_u32 s37, s13, 0")
    g("s_and_b32 s38, s24, 1")
    g("s_lshl_b32 s38, s38, 4")
    if len(thrs) > 1:
        g("s_getreg_b32 s39, hwreg(HW_REG_XCC_ID)")
        g("s_and_b32 s39, s39, 1")
    g("s_mov_b32 s40, 0x00ff00ff")
    g("s_mov_b32 s41, 0x00ff00ff")
    for tt in range(1, 4):
        m = 0x11111111 << tt
        g(f"s_mov_b32 s{40+2*tt}, 0x{m:08x}")
        g(f"s_mov_b32 s{41+2*tt}, 0x{m:08x}")
    g("v_and_b32 v24, 1, v13")
    g("v_lshlrev_b32 v24, 4, v24")
    g("v_mov_b32 v25, 0xffff")
    g("v_lshlrev_b32 v24, v24, v25")
    for j in range(4):
        m = (0x3 << (2 * j)); m |= m << 16
        g(f"s_mov_b32 vcc_lo, 0x{m:08x}")
        g(f"s_mov_b32 vcc_hi, 0x{m:08x}")
        g(f"v_cndmask_b32 v{MASK+j}, 0, v24, vcc")
    g(f"v_mov_b32 v{vM}, 0xff800000")
    g(f"v_mov_b32 v{vL}, 0")
    g(f"v_lshlrev_b32 v{vLds}, 2, v0")
    for j in range(4):
        g(f"v_mov_b32 v{DO+j}, 0")
    g("s_waitcnt vmcnt(20)")
    for n in range(4):
        m = (0xf << (4 * n)); m |= m << 16
        g(f"s_mov_b32 vcc_lo, 0x{m:08x}")
        g(f"s_mov_b32 vcc_hi, 0x{m:08x}")
        for j in range(4):
            g(f"v_cndmask_b32 v{BQ+4*n+j}, 0, v{BP0+j}, vcc")
    for st in range(5, 8):
        for n in range(4):
            load1(st, n, 0)

    def kloop(tag, thr):
        g("s_mov_b32 s26, 64")
        g.raw(".p2align 3")
        g.label(f"L_loopK{tag}")
        g("s_cmp_lg_u32 s26, 1")
        g(f"s_cbranch_scc1 L_kgo{tag}")
        g("s_mov_b32 s16, s20")
        g("s_mov_b32 s17, s21")
        g("s_mov_b32 s29, 0")
        g(f"v_mov_b32 v{vOff}, v{vVoff}")
        g.label(f"L_kgo{tag}")
        for st in range(8):
            tt = st % 4
            G = vG + st // 4
            g("s_waitcnt vmcnt(28)")
            for n in range(4):
                c = "0" if n == 0 else r4(DS)
                g(f"v_mfma_f32_16x16x32_bf16 {r4(DS)}, {r4(breg(st,n))}, {r4(BQ+4*n)}, {c}")
                if inter and n < 2:
                    load1(st, n, thr[n])
            if inter:
                load1(st, 2, thr[2])
                g("s_nop 5")
            else:
                for n in range(4):
                    load1(st, n, thr[n])
            g(f"v_mov_b32_dpp v{vT}, v{DS} quad_perm:[0,0,0,0] {DPP}")
            g(f"v_mov_b32_dpp v{vTmp}, v{DS+2} quad_perm:[2,2,2,2] {DPP}")
            g("s_nop 0")
            g(f"v_add_f32_dpp v{vT}, v{DS+1}, v{vT} quad_perm:[1,1,1,1] {DPP}")
            g(f"v_add_f32_dpp v{vTmp}, v{DS+3}, v{vTmp} quad_perm:[3,3,3,3] {DPP}")
            if tt == 0:
                g(f"v_add_f32 v{G}, v{vT}, v{vTmp}")
            else:
                g(f"v_add_f32 v{vT}, v{vT}, v{vTmp}")
                g(f"v_cndmask_b32 v{G}, v{G}, v{vT}, s[{40+2*tt}:{41+2*tt}]")
            if tt == 3:
                g(f"v_max_f32 v{vM}, v{vM}, v{G}")
                g(f"ds_write_b32 v{vLds}, v{G} offset:{256*(st//4)}")
            if inter:
                load1(st, 3, thr[3])
        g(f"v_add_u32 v{vLds}, 512, v{vLds}")
        g("s_sub_u32 s26, s26, 1")
        g("s_cmp_lg_u32 s26, 0")
        g(f"s_cbranch_scc1 L_loopK{tag}")

    def vtop():
        g(f"v_add_u32 v{vLds}, 512, v{vLds}")
        g("s_waitcnt lgkmcnt(0)")
        g(f"v_fma_f32 v{vT}, v{vG}, s30, -v{vMC}")
        g(f"v_fma_f32 v{vP}, v{vG+1}, s30, -v{vMC}")
        g(f"v_exp_f32 v{vT}, v{vT}")
        g(f"v_exp_f32 v{vP}, v{vP}")
        g(f"ds_read_b32 v{vG}, v{vLds}")
        g(f"ds_read_b32 v{vG+1}, v{vLds} offset:256")
        g(f"v_cvt_pk_bf16_f32 v{vPK}, v{vT}, v{vT}")
        g(f"v_cvt_pk_bf16_f32 v{vPK+1}, v{vP}, v{vP}")
        g(f"v_add_f32 v{vL}, v{vL}, v{vT}")
        g(f"v_add_f32 v{vL}, v{vL}, v{vP}")

    def vtile(st, thr, wait, loads=True):
        tt = st % 4
        PK = vPK + st // 4
        for n in range(4):
            bp = BP0 if n % 2 == 0 else BP1
            for j in range(4):
                g(f"v_and_b32_dpp v{bp+j}, v{PK}, v{MASK+j} row_newbcast:{4*n+tt} {DPP}")
            if n == 1:
                g(f"s_waitcnt vmcnt({wait})")
            if n > 0:
                pb = BP0 if (n - 1) % 2 == 0 else BP1
                g(f"v_mfma_f32_16x16x32_bf16 {r4(DO)}, {r4(breg(st,n-1))}, {r4(pb)}, {r4(DO)}")
                if loads and inter:
                    load1(st, n - 1, thr[n - 1])
        if not (loads and inter):
            g("s_nop 0")
        g(f"v_mfma_f32_16x16x32_bf16 {r4(DO)}, {r4(breg(st,3))}, {r4(BP1)}, {r4(DO)}")
        if loads:
            for n in (range(3, 4) if inter else range(4)):
                load1(st, n, thr[n])

    def vloop(tag, thr, count):
        g(f"s_mov_b32 s26, {count}")
        g.raw(".p2align 3")
        g.label(f"L_loopV{tag}")
        vtop()
        for st in range(8):
            vtile(st, thr, 28)
        g("s_sub_u32 s26, s26, 1")
        g("s_cmp_lg_u32 s26, 0")
        g(f"s_cbranch_scc1 L_loopV{tag}")

    def trans():
        g(f"v_lshlrev_b32 v{vLds}, 2, v0")
        g(f"ds_read_b32 v{vG}, v{vLds}")
        g(f"ds_read_b32 v{vG+1}, v{vLds} offset:256")
        allreduce("v_max_f32", vM)
        g(f"v_mul_f32 v{vMC}, s30, v{vM}")

    if len(thrs) > 1:
        g("s_cmp_lg_u32 s39, 0")
        g("s_cbranch_scc1 L_odd")
    for i, thr in enumerate(thrs):
        if i:
            g.label("L_odd")
        kloop(str(i), thr)
        trans()
        vloop(str(i), thr, 63 - endn)
        if i < len(thrs) - 1:
            g("s_branch L_endgame")
    g.label("L_endgame")
    if endn:
        vloop("E", (endthr,) * 4, endn)
    vtop()
    extra = 0
    if fast:
        g("v_mov_b32 v11, 0")
        g(f"global_load_dword v{vTmp2}, v11, s[36:37] sc0 sc1")
        extra = 1
    for st in range(8):
        if fast and st == 7:
            g("s_waitcnt vmcnt(0)")
            g(f"v_readfirstlane_b32 s27, v{vTmp2}")
            g("s_lshr_b32 s27, s27, s38")
            g("s_and_b32 s27, s27, 0xffff")
            g("s_cmp_eq_u32 s27, 0")
            g("s_cbranch_scc1 L_nopre")
            g(f"global_load_dwordx4 {r4(PR)}, v{vVoff}, s[34:35] sc0 sc1")
            g.label("L_nopre")
            vtile(st, None, 63, loads=False)
        else:
            vtile(st, None, 28 - 4 * st + extra, loads=False)
    if stamp:
        g("s_waitcnt lgkmcnt(0)")
        g("s_memrealtime s[52:53]")
    allreduce("v_add_f32", vL)
    for j in range(4):
        src = vMC if j % 2 == 0 else vL
        g(f"v_cndmask_b32 v{BP0+j}, v{src}, v{DO+j}, s[40:41]")
    g("v_and_b32 v13, 15, v0")
    g("v_lshrrev_b32 v14, 4, v0")
    g("v_lshlrev_b32 v14, 6, v14")
    g("v_lshlrev_b32 v13, 1, v13")
    g("v_add_u32 v13, v13, v14")
    if fast:
        g("s_cmp_lg_u32 s27, 0")
        g("s_cbranch_scc1 L_comb")
    g(f"global_store_dwordx4 v{vVoff}, {r4(BP0)}, s[32:33] sc0 sc1")
    g("s_lshl_b32 s28, 1, s38")
    if vatom:
        g(f"v_mov_b32 v{vTmp}, s28")
        g("v_mov_b32 v11, 0")
        g("s_mov_b64 exec, 1")
        g("s_waitcnt vmcnt(0)")
        g(f"global_atomic_add v{vTmp2}, v11, v{vTmp}, s[36:37] sc0 sc1")
        g("s_waitcnt vmcnt(0)")
        g(f"v_readfirstlane_b32 s28, v{vTmp2}")
        g("s_mov_b64 exec, -1")
    else:
        g("s_waitcnt vmcnt(0) lgkmcnt(0)")
        g("s_atomic_add s28, s[36:37], 0x0 glc")
        g("s_waitcnt lgkmcnt(0)")
    g("s_lshr_b32 s28, s28, s38")
    g("s_and_b32 s28, s28, 0xffff")
    g("s_cmp_lg_u32 s28, 1")
    g("s_cbranch_scc1 L_exit")
    g(f"global_load_dwordx4 {r4(PR)}, v{vVoff}, s[34:35] sc0 sc1")
    g.label("L_comb")
    g("s_waitcnt vmcnt(0)")
    ra, rb, acc = BP0, PR, 32
    g(f"v_max_f32 v12, v{ra}, v{rb}")
    g(f"v_sub_f32 v14, v{ra}, v12")
    g(f"v_sub_f32 v15, v{rb}, v12")
    g("v_exp_f32 v14, v14")
    g("v_exp_f32 v15, v15")
    g("s_nop 1")
    for j in range(4):
        g(f"v_mul_f32_dpp v{acc+j}, v14, v{ra+j} row_newbcast:8 {DPP}")
    for j in range(4):
        g(f"v_mul_f32_dpp v{acc+4+j}, v15, v{rb+j} row_newbcast:8 {DPP}")
    for j in range(4):
        g(f"v_add_f32 v{acc+j}, v{acc+j}, v{acc+4+j}")
    g(f"v_rcp_f32 v12, v{acc+1}")
    g("s_nop 1")
    for j in range(4):
        g(f"v_mul_f32_dpp v{acc+j}, v12, v{acc+j} row_newbcast:8 {DPP}")
    for j in range(4):
        g(f"v_cvt_pk_bf16_f32 v{acc+j}, v{acc+j}, v{acc+j}")
    g("s_mov_b64 exec, s[40:41]")
    for j in range(4):
        g(f"global_store_short v13, v{32+j}, s[10:11] offset:{16*j}")
    g.label("L_exit")
    if stamp:
        g("s_mov_b64 exec, -1")
        g("s_waitcnt vmcnt(0)")
        g("s_memrealtime s[60:61]")
        g("s_getreg_b32 s54, hwreg(HW_REG_XCC_ID)")
        g("s_lshl_b32 s56, s2, 5")
        g("s_add_u32 s56, s56, 0x1000000")
        g("s_waitcnt lgkmcnt(0)")
        for i, sr in enumerate([50, 51, 52, 53, 54, 60, 56]):
            g(f"v_mov_b32 v{64+i}, s{sr}")
        g("global_store_dwordx4 v70, v[64:67], s[14:15]")
        g("global_store_dwordx2 v70, v[68:69], s[14:15] offset:16")
    g.label("L_end1")
    g("s_endpgm")
    g.raw('.section .rodata,"a"')
    g.raw(".p2align 6")
    g.raw(kd(k1, nv, 64))
    return g.text()


def pat(s):
    x = float(s); b = int(x); k = round((x - b) * 4)
    order = [0, 2, 1, 3]
    p = [b] * 4
    for i in range(k):
        p[order[i]] += 1
    return tuple(p)


if __name__ == "__main__":
    ap = argparse.ArgumentParser()
    ap.add_argument("--thr", default="20")
    ap.add_argument("--nointer", action="store_true")
    ap.add_argument("--endn", type=int, default=0)
    ap.add_argument("--endthr", type=int, default=28)
    ap.add_argument("--fast", action="store_true")
    ap.add_argument("--satom", action="store_true")
    ap.add_argument("--flags", default="nt")
    ap.add_argument("--lds", type=int, default=90000)
    ap.add_argument("--stamp", action="store_true")
    ap.add_argument("-o", default="/dev/stdout")
    a = ap.parse_args()
    thrs = tuple(pat(x) for x in a.thr.split(","))
    open(a.o, "w").write(gen(thrs, not a.nointer, a.endn, a.endthr, a.fast, a.flags, a.lds, a.stamp, not a.satom))
```

```python
import argparse
from gen import Gen, kd, f32bits, HEADER, NAME, CONST_C

DPP = "row_mask:0xf bank_mask:0xf"


def gen(thrs=((20, 20, 20, 20),), inter=True, endn=0, endthr=28, fast=False, flags="nt", lds=90000,
        stamp=False, vatom=True, krep=1, perm=0, thrv=None):
    g = Gen()
    k1 = NAME + "_kernel"
    vOff, vVoff, vM, vMC, vL, vT, vP, vLds, vTmp, vTmp2 = 1, 2, 3, 4, 5, 6, 7, 8, 9, 10
    DS, DO, BP0, BP1, MASK, BQ = 12, 16, 20, 24, 28, 32
    vG, vPK = 48, 50
    PR = 52
    BUF = 56
    nv = BUF + 128
    NREC = 1 << 21

    def r4(b): return f"v[{b}:{b+3}]"
    def breg(st, n): return BUF + 16 * st + 4 * n
    fl = (" " + flags) if flags else ""

    def load1(st, n, t):
        if perm:
            p = 4 * st + n
            if perm == 1:   off = (p % 8) * 4096 + (p // 8) * 1024
            elif perm == 2: off = (p % 4) * 8192 + (p // 4) * 1024
            elif perm == 3: off = ((p // 2) % 8) * 4096 + (p // 16) * 2048 + (p % 2) * 1024
            elif perm == 4: off = (p % 2) * 16384 + (p // 2) * 1024
            g(f"s_add_u32 s25, s29, {off & ~4095}")
            if t: g(f"s_waitcnt vmcnt({t-1})")
            g(f"buffer_load_dwordx4 {r4(breg(st,n))}, v{vOff}, s[16:19], s25 offen offset:{off & 4095}{fl}")
            if p == 31:
                g("s_add_u32 s29, s29, 32768")
            return
        if t: g(f"s_waitcnt vmcnt({t-1})")
        g(f"buffer_load_dwordx4 {r4(breg(st,n))}, v{vOff}, s[16:19], s29 offen offset:{n*1024}{fl}")
        if n == 3:
            g("s_add_u32 s29, s29, 4096")

    def allreduce(op, v):
        for ror in (1, 2, 4, 8):
            g("s_nop 1")
            g(f"{op}_dpp v{v}, v{v}, v{v} row_ror:{ror} {DPP}")
        for sw in ("16", "32"):
            g(f"v_mov_b32 v{vTmp}, v{v}")
            g("s_nop 1")
            g(f"v_permlane{sw}_swap_b32 v{v}, v{vTmp}")
            g("s_nop 1")
            g(f"{op} v{v}, v{v}, v{vTmp}")

    g.raw(HEADER.rstrip("\n"))
    g.raw(f"; @launch grid=(256,1,1) block=(64,1,1) lds={lds}")
    g.raw('.amdgcn_target "amdgcn-amd-amdhsa--gfx950"')
    g.raw(".text")
    g.raw(f".globl {k1}")
    g.raw(".p2align 8")
    g.raw(f".type {k1},@function")
    g.label(k1)
    g("s_load_dwordx8 s[4:11], s[0:1], 0")
    g("s_load_dwordx4 s[12:15], s[0:1], 32")
    if stamp:
        g("s_memrealtime s[50:51]")
    g("s_cmp_ge_u32 s2, 256")
    g("s_cbranch_scc1 L_end1")
    g("s_lshr_b32 s24, s2, 1")
    g("v_and_b32 v13, 15, v0")
    g("v_lshrrev_b32 v14, 4, v0")
    g("v_lshrrev_b32 v16, 2, v13")
    g("v_lshlrev_b32 v16, 8, v16")
    g("v_and_b32 v17, 3, v13")
    g("v_lshlrev_b32 v17, 4, v17")
    g("v_lshlrev_b32 v18, 6, v14")
    g("v_add_u32 v17, v17, v18")
    g(f"v_add_u32 v{vOff}, v16, v17")
    g(f"v_lshlrev_b32 v{vVoff}, 4, v0")
    g("s_lshl_b32 s28, s2, 21")
    g("s_mov_b32 s29, 0")
    g("s_lshl_b32 s31, s24, 8")
    g(f"s_mov_b32 s18, {NREC}")
    g("s_mov_b32 s19, 0x00020000")
    g("s_waitcnt lgkmcnt(0)")
    g("s_add_u32 s16, s6, s28")
    g("s_addc_u32 s17, s7, 0")
    g("s_and_b32 s17, s17, 0xffff")
    g("s_add_u32 s4, s4, s31")
    g("s_addc_u32 s5, s5, 0")
    g(f"global_load_dwordx4 {r4(BP0)}, v17, s[4:5]")
    for st in range(5):
        for n in range(4):
            load1(st, n, 0)
    g("s_add_u32 s20, s8, s28")
    g("s_addc_u32 s21, s9, 0")
    g("s_and_b32 s21, s21, 0xffff")
    g(f"s_mov_b32 s30, 0x{f32bits(CONST_C):08x}")
    g("s_add_u32 s10, s10, s31")
    g("s_addc_u32 s11, s11, 0")
    g("s_lshl_b32 s28, s2, 10")
    g("s_add_u32 s32, s14, s28")
    g("s_addc_u32 s33, s15, 0")
    g("s_xor_b32 s28, s28, 1024")
    g("s_add_u32 s34, s14, s28")
    g("s_addc_u32 s35, s15, 0")
    g("s_lshr_b32 s28, s2, 2")
    g("s_lshl_b32 s28, s28, 2")
    g("s_add_u32 s36, s12, s28")
    g("s_addc_u32 s37, s13, 0")
    g("s_and_b32 s38, s24, 1")
    g("s_lshl_b32 s38, s38, 4")
    if len(thrs) > 1:
        g("s_getreg_b32 s39, hwreg(HW_REG_XCC_ID)")
        g("s_and_b32 s39, s39, 1")
    g("s_mov_b32 s40, 0x00ff00ff")
    g("s_mov_b32 s41, 0x00ff00ff")
    for tt in range(1, 4):
        m = 0x11111111 << tt
        g(f"s_mov_b32 s{40+2*tt}, 0x{m:08x}")
        g(f"s_mov_b32 s{41+2*tt}, 0x{m:08x}")
    g("v_and_b32 v24, 1, v13")
    g("v_lshlrev_b32 v24, 4, v24")
    g("v_mov_b32 v25, 0xffff")
    g("v_lshlrev_b32 v24, v24, v25")
    for j in range(4):
        m = (0x3 << (2 * j)); m |= m << 16
        g(f"s_mov_b32 vcc_lo, 0x{m:08x}")
        g(f"s_mov_b32 vcc_hi, 0x{m:08x}")
        g(f"v_cndmask_b32 v{MASK+j}, 0, v24, vcc")
    g(f"v_mov_b32 v{vM}, 0xff800000")
    g(f"v_mov_b32 v{vL}, 0")
    g(f"v_lshlrev_b32 v{vLds}, 2, v0")
    for j in range(4):
        g(f"v_mov_b32 v{DO+j}, 0")
    g("s_waitcnt vmcnt(20)")
    for n in range(4):
        m = (0xf << (4 * n)); m |= m << 16
        g(f"s_mov_b32 vcc_lo, 0x{m:08x}")
        g(f"s_mov_b32 vcc_hi, 0x{m:08x}")
        for j in range(4):
            g(f"v_cndmask_b32 v{BQ+4*n+j}, 0, v{BP0+j}, vcc")
    for st in range(5, 8):
        for n in range(4):
            load1(st, n, 0)

    def kloop(tag, thr):
        g(f"s_mov_b32 s26, {64*krep}")
        g.raw(".p2align 3")
        g.label(f"L_loopK{tag}")
        if krep > 1:
            g("s_and_b32 s29, s29, 0x1fffff")
            g(f"v_and_b32 v{vLds}, 0x7fff, v{vLds}")
        g("s_cmp_lg_u32 s26, 1")
        g(f"s_cbranch_scc1 L_kgo{tag}")
        g("s_mov_b32 s16, s20")
        g("s_mov_b32 s17, s21")
        g("s_mov_b32 s29, 0")
        g(f"v_mov_b32 v{vOff}, v{vVoff}")
        g.label(f"L_kgo{tag}")
        for st in range(8):
            tt = st % 4
            G = vG + st // 4
            g("s_waitcnt vmcnt(28)")
            for n in range(4):
                c = "0" if n == 0 else r4(DS)
                g(f"v_mfma_f32_16x16x32_bf16 {r4(DS)}, {r4(breg(st,n))}, {r4(BQ+4*n)}, {c}")
                if inter and n < 2:
                    load1(st, n, thr[n])
            if inter:
                load1(st, 2, thr[2])
                g("s_nop 5")
            else:
                for n in range(4):
                    load1(st, n, thr[n])
            g(f"v_mov_b32_dpp v{vT}, v{DS} quad_perm:[0,0,0,0] {DPP}")
            g(f"v_mov_b32_dpp v{vTmp}, v{DS+2} quad_perm:[2,2,2,2] {DPP}")
            g("s_nop 0")
            g(f"v_add_f32_dpp v{vT}, v{DS+1}, v{vT} quad_perm:[1,1,1,1] {DPP}")
            g(f"v_add_f32_dpp v{vTmp}, v{DS+3}, v{vTmp} quad_perm:[3,3,3,3] {DPP}")
            if tt == 0:
                g(f"v_add_f32 v{G}, v{vT}, v{vTmp}")
            else:
                g(f"v_add_f32 v{vT}, v{vT}, v{vTmp}")
                g(f"v_cndmask_b32 v{G}, v{G}, v{vT}, s[{40+2*tt}:{41+2*tt}]")
            if tt == 3:
                g(f"v_max_f32 v{vM}, v{vM}, v{G}")
                g(f"ds_write_b32 v{vLds}, v{G} offset:{256*(st//4)}")
            if inter:
                load1(st, 3, thr[3])
        g(f"v_add_u32 v{vLds}, 512, v{vLds}")
        g("s_sub_u32 s26, s26, 1")
        g("s_cmp_lg_u32 s26, 0")
        g(f"s_cbranch_scc1 L_loopK{tag}")

    def vtop():
        g(f"v_add_u32 v{vLds}, 512, v{vLds}")
        g("s_waitcnt lgkmcnt(0)")
        g(f"v_fma_f32 v{vT}, v{vG}, s30, -v{vMC}")
        g(f"v_fma_f32 v{vP}, v{vG+1}, s30, -v{vMC}")
        g(f"v_exp_f32 v{vT}, v{vT}")
        g(f"v_exp_f32 v{vP}, v{vP}")
        g(f"ds_read_b32 v{vG}, v{vLds}")
        g(f"ds_read_b32 v{vG+1}, v{vLds} offset:256")
        g(f"v_cvt_pk_bf16_f32 v{vPK}, v{vT}, v{vT}")
        g(f"v_cvt_pk_bf16_f32 v{vPK+1}, v{vP}, v{vP}")
        g(f"v_add_f32 v{vL}, v{vL}, v{vT}")
        g(f"v_add_f32 v{vL}, v{vL}, v{vP}")

    def vtile(st, thr, wait, loads=True):
        tt = st % 4
        PK = vPK + st // 4
        for n in range(4):
            bp = BP0 if n % 2 == 0 else BP1
            for j in range(4):
                g(f"v_and_b32_dpp v{bp+j}, v{PK}, v{MASK+j} row_newbcast:{4*n+tt} {DPP}")
            if n == 1:
                g(f"s_waitcnt vmcnt({wait})")
            if n > 0:
                pb = BP0 if (n - 1) % 2 == 0 else BP1
                g(f"v_mfma_f32_16x16x32_bf16 {r4(DO)}, {r4(breg(st,n-1))}, {r4(pb)}, {r4(DO)}")
                if loads and inter:
                    load1(st, n - 1, thr[n - 1])
        if not (loads and inter):
            g("s_nop 0")
        g(f"v_mfma_f32_16x16x32_bf16 {r4(DO)}, {r4(breg(st,3))}, {r4(BP1)}, {r4(DO)}")
        if loads:
            for n in (range(3, 4) if inter else range(4)):
                load1(st, n, thr[n])

    def vloop(tag, thr, count):
        g(f"s_mov_b32 s26, {count}")
        g.raw(".p2align 3")
        g.label(f"L_loopV{tag}")
        vtop()
        for st in range(8):
            vtile(st, thr, 28)
        g("s_sub_u32 s26, s26, 1")
        g("s_cmp_lg_u32 s26, 0")
        g(f"s_cbranch_scc1 L_loopV{tag}")

    def trans():
        g(f"v_lshlrev_b32 v{vLds}, 2, v0")
        g(f"ds_read_b32 v{vG}, v{vLds}")
        g(f"ds_read_b32 v{vG+1}, v{vLds} offset:256")
        allreduce("v_max_f32", vM)
        g(f"v_mul_f32 v{vMC}, s30, v{vM}")

    if len(thrs) > 1:
        g("s_cmp_lg_u32 s39, 0")
        g("s_cbranch_scc1 L_odd")
    for i, thr in enumerate(thrs):
        if i:
            g.label("L_odd")
        kloop(str(i), thr)
        trans()
        vloop(str(i), thrv or thr, 63 - endn)
        if i < len(thrs) - 1:
            g("s_branch L_endgame")
    g.label("L_endgame")
    if endn:
        vloop("E", (endthr,) * 4, endn)
    vtop()
    allreduce("v_add_f32", vL)
    g("v_and_b32 v13, 15, v0")
    g("v_lshrrev_b32 v14, 4, v0")
    g("v_lshlrev_b32 v14, 6, v14")
    g("v_lshlrev_b32 v13, 1, v13")
    g("v_add_u32 v13, v13, v14")
    g("s_lshl_b32 s28, 1, s38")
    g(f"v_mov_b32 v{vP}, s28")
    g("v_mov_b32 v11, 0")
    extra = 0
    if fast:
        g("v_mov_b32 v11, 0")
        g(f"global_load_dword v{vTmp2}, v11, s[36:37] sc0 sc1")
        extra = 1
    for st in range(8):
        if fast and st == 7:
            g("s_waitcnt vmcnt(0)")
            g(f"v_readfirstlane_b32 s27, v{vTmp2}")
            g("s_lshr_b32 s27, s27, s38")
            g("s_and_b32 s27, s27, 0xffff")
            g("s_cmp_eq_u32 s27, 0")
            g("s_cbranch_scc1 L_nopre")
            g(f"global_load_dwordx4 {r4(PR)}, v{vVoff}, s[34:35] sc0 sc1")
            g.label("L_nopre")
            vtile(st, None, 63, loads=False)
        else:
            vtile(st, None, 28 - 4 * st + extra, loads=False)
    if stamp:
        g("s_waitcnt lgkmcnt(0)")
        g("s_memrealtime s[52:53]")
    g("s_nop 7")
    for j in range(4):
        src = vMC if j % 2 == 0 else vL
        g(f"v_cndmask_b32 v{BP0+j}, v{src}, v{DO+j}, s[40:41]")
    if fast:
        g("s_cmp_lg_u32 s27, 0")
        g("s_cbranch_scc1 L_comb")
    g(f"global_store_dwordx4 v{vVoff}, {r4(BP0)}, s[32:33] sc0 sc1")
    if vatom:
        g("s_mov_b64 exec, 1")
        g("s_waitcnt vmcnt(0)")
        g(f"global_atomic_add v{vTmp2}, v11, v{vP}, s[36:37] sc0 sc1")
        g("s_waitcnt vmcnt(0)")
        g(f"v_readfirstlane_b32 s28, v{vTmp2}")
        g("s_mov_b64 exec, -1")
    else:
        g("s_waitcnt vmcnt(0) lgkmcnt(0)")
        g("s_atomic_add s28, s[36:37], 0x0 glc")
        g("s_waitcnt lgkmcnt(0)")
    g("s_lshr_b32 s28, s28, s38")
    g("s_and_b32 s28, s28, 0xffff")
    g("s_cmp_lg_u32 s28, 1")
    g("s_cbranch_scc1 L_exit")
    g(f"global_load_dwordx4 {r4(PR)}, v{vVoff}, s[34:35] sc0 sc1")
    g.label("L_comb")
    g("s_waitcnt vmcnt(0)")
    ra, rb, acc = BP0, PR, 32
    g(f"v_max_f32 v12, v{ra}, v{rb}")
    g(f"v_sub_f32 v14, v{ra}, v12")
    g(f"v_sub_f32 v15, v{rb}, v12")
    g("v_exp_f32 v14, v14")
    g("v_exp_f32 v15, v15")
    g("s_nop 1")
    for j in range(4):
        g(f"v_mul_f32_dpp v{acc+j}, v14, v{ra+j} row_newbcast:8 {DPP}")
    for j in range(4):
        g(f"v_mul_f32_dpp v{acc+4+j}, v15, v{rb+j} row_newbcast:8 {DPP}")
    for j in range(4):
        g(f"v_add_f32 v{acc+j}, v{acc+j}, v{acc+4+j}")
    g(f"v_rcp_f32 v12, v{acc+1}")
    g("s_nop 1")
    for j in range(4):
        g(f"v_mul_f32_dpp v{acc+j}, v12, v{acc+j} row_newbcast:8 {DPP}")
    for j in range(4):
        g(f"v_cvt_pk_bf16_f32 v{acc+j}, v{acc+j}, v{acc+j}")
    g("s_mov_b64 exec, s[40:41]")
    for j in range(4):
        g(f"global_store_short v13, v{32+j}, s[10:11] offset:{16*j}")
    g.label("L_exit")
    if stamp:
        g("s_mov_b64 exec, -1")
        g("s_waitcnt vmcnt(0)")
        g("s_memrealtime s[60:61]")
        g("s_getreg_b32 s54, hwreg(HW_REG_XCC_ID)")
        g("s_lshl_b32 s56, s2, 5")
        g("s_add_u32 s56, s56, 0x1000000")
        g("s_waitcnt lgkmcnt(0)")
        for i, sr in enumerate([50, 51, 52, 53, 54, 60, 56]):
            g(f"v_mov_b32 v{64+i}, s{sr}")
        g("global_store_dwordx4 v70, v[64:67], s[14:15]")
        g("global_store_dwordx2 v70, v[68:69], s[14:15] offset:16")
    g.label("L_end1")
    g("s_endpgm")
    g.raw('.section .rodata,"a"')
    g.raw(".p2align 6")
    g.raw(kd(k1, nv, 64))
    return g.text()


def pat(s):
    x = float(s); b = int(x); k = round((x - b) * 4)
    order = [0, 2, 1, 3]
    p = [b] * 4
    for i in range(k):
        p[order[i]] += 1
    return tuple(p)


if __name__ == "__main__":
    ap = argparse.ArgumentParser()
    ap.add_argument("--thr", default="20")
    ap.add_argument("--nointer", action="store_true")
    ap.add_argument("--endn", type=int, default=0)
    ap.add_argument("--endthr", type=int, default=28)
    ap.add_argument("--fast", action="store_true")
    ap.add_argument("--satom", action="store_true")
    ap.add_argument("--krep", type=int, default=1)
    ap.add_argument("--perm", type=int, default=0)
    ap.add_argument("--thrv", default=None)
    ap.add_argument("--flags", default="nt")
    ap.add_argument("--lds", type=int, default=90000)
    ap.add_argument("--stamp", action="store_true")
    ap.add_argument("-o", default="/dev/stdout")
    a = ap.parse_args()
    thrs = tuple(pat(x) for x in a.thr.split(","))
    open(a.o, "w").write(gen(thrs, not a.nointer, a.endn, a.endthr, a.fast, a.flags, a.lds, a.stamp, not a.satom, a.krep, a.perm, pat(a.thrv) if a.thrv else None))
```

```python
import argparse
from gen import Gen, kd, f32bits, HEADER, NAME, CONST_C
from gen6 import pat

DPP = "row_mask:0xf bank_mask:0xf"
CTR = 0x200000


def gen(thrk, neutral, levels, cuts, sched, Q=2, flags="nt", lds=90000, stamp=False, ksched=(), klevels=None):
    g = Gen()
    k1 = NAME + "_kernel"
    vOff, vVoff, vM, vMC, vL, vT, vP, vLds, vTmp, vTmp2 = 1, 2, 3, 4, 5, 6, 7, 8, 9, 10
    DS, DO, BP0, BP1, MASK, BQ = 12, 16, 20, 24, 28, 32
    vG, vPK = 48, 50
    PR = 52
    BUF = 56
    nv = BUF + 128
    NREC = 1 << 21
    fb = len(sched) + len(ksched) > 0
    NEUT = -0x40000000
    if klevels is None:
        klevels = levels

    def r4(b): return f"v[{b}:{b+3}]"
    def breg(st, n): return BUF + 16 * st + 4 * n
    fl = (" " + flags) if flags else ""

    def load1(st, n, t):
        if t: g(f"s_waitcnt vmcnt({t-1})")
        g(f"buffer_load_dwordx4 {r4(breg(st,n))}, v{vOff}, s[16:19], s29 offen offset:{n*1024}{fl}")
        if n == 3:
            g("s_add_u32 s29, s29, 4096")

    def allreduce(op, v):
        for ror in (1, 2, 4, 8):
            g("s_nop 1")
            g(f"{op}_dpp v{v}, v{v}, v{v} row_ror:{ror} {DPP}")
        for sw in ("16", "32"):
            g(f"v_mov_b32 v{vTmp}, v{v}")
            g("s_nop 1")
            g(f"v_permlane{sw}_swap_b32 v{v}, v{vTmp}")
            g("s_nop 1")
            g(f"{op} v{v}, v{v}, v{vTmp}")

    def setmasks(sc):
        ms = sum(1 << x for x in sc)
        mc = sum(1 << (x - Q) for x in sc)
        g(f"s_mov_b32 s58, 0x{ms & 0xffffffff:08x}")
        g(f"s_mov_b32 s59, 0x{ms >> 32:08x}")
        g(f"s_mov_b32 s60, 0x{mc & 0xffffffff:08x}")
        g(f"s_mov_b32 s61, 0x{mc >> 32:08x}")

    g.raw(HEADER.rstrip("\n"))
    g.raw(f"; @launch grid=(256,1,1) block=(64,1,1) lds={lds}")
    g.raw('.amdgcn_target "amdgcn-amd-amdhsa--gfx950"')
    g.raw(".text")
    g.raw(f".globl {k1}")
    g.raw(".p2align 8")
    g.raw(f".type {k1},@function")
    g.label(k1)
    g("s_load_dwordx8 s[4:11], s[0:1], 0")
    g("s_load_dwordx4 s[12:15], s[0:1], 32")
    if stamp:
        g("s_memrealtime s[50:51]")
    g("s_cmp_ge_u32 s2, 256")
    g("s_cbranch_scc1 L_end1")
    g("s_lshr_b32 s24, s2, 1")
    g("v_and_b32 v13, 15, v0")
    g("v_lshrrev_b32 v14, 4, v0")
    g("v_lshrrev_b32 v16, 2, v13")
    g("v_lshlrev_b32 v16, 8, v16")
    g("v_and_b32 v17, 3, v13")
    g("v_lshlrev_b32 v17, 4, v17")
    g("v_lshlrev_b32 v18, 6, v14")
    g("v_add_u32 v17, v17, v18")
    g(f"v_add_u32 v{vOff}, v16, v17")
    g(f"v_lshlrev_b32 v{vVoff}, 4, v0")
    g("s_lshl_b32 s28, s2, 21")
    g("s_mov_b32 s29, 0")
    g("s_lshl_b32 s31, s24, 8")
    g(f"s_mov_b32 s18, {NREC}")
    g("s_mov_b32 s19, 0x00020000")
    g("s_waitcnt lgkmcnt(0)")
    g("s_add_u32 s16, s6, s28")
    g("s_addc_u32 s17, s7, 0")
    g("s_and_b32 s17, s17, 0xffff")
    g("s_add_u32 s4, s4, s31")
    g("s_addc_u32 s5, s5, 0")
    g(f"global_load_dwordx4 {r4(BP0)}, v17, s[4:5]")
    for st in range(5):
        for n in range(4):
            load1(st, n, 0)
    g("s_add_u32 s20, s8, s28")
    g("s_addc_u32 s21, s9, 0")
    g("s_and_b32 s21, s21, 0xffff")
    g(f"s_mov_b32 s30, 0x{f32bits(CONST_C):08x}")
    g("s_add_u32 s10, s10, s31")
    g("s_addc_u32 s11, s11, 0")
    g("s_lshl_b32 s28, s2, 10")
    g("s_add_u32 s32, s14, s28")
    g("s_addc_u32 s33, s15, 0")
    g("s_xor_b32 s28, s28, 1024")
    g("s_add_u32 s34, s14, s28")
    g("s_addc_u32 s35, s15, 0")
    g("s_lshr_b32 s28, s2, 2")
    g("s_lshl_b32 s28, s28, 2")
    g("s_add_u32 s36, s12, s28")
    g("s_addc_u32 s37, s13, 0")
    g("s_and_b32 s38, s24, 1")
    g("s_lshl_b32 s38, s38, 4")
    if fb:
        g("s_lshr_b32 s28, s2, 3")
        g("s_lshl_b32 s28, s28, 12")
        g(f"s_add_u32 s28, s28, 0x{CTR:x}")
        g("s_add_u32 s22, s14, s28")
        g("s_addc_u32 s23, s15, 0")
        g("s_mov_b32 s39, 0")
        g("s_atomic_add s39, s[22:23], 0x0 glc")
        g(f"s_mov_b32 s48, 0x{NEUT & 0xffffffff:08x}")
    g("s_mov_b32 s40, 0x00ff00ff")
    g("s_mov_b32 s41, 0x00ff00ff")
    for tt in range(1, 4):
        m = 0x11111111 << tt
        g(f"s_mov_b32 s{40+2*tt}, 0x{m:08x}")
        g(f"s_mov_b32 s{41+2*tt}, 0x{m:08x}")
    g("v_and_b32 v24, 1, v13")
    g("v_lshlrev_b32 v24, 4, v24")
    g("v_mov_b32 v25, 0xffff")
    g("v_lshlrev_b32 v24, v24, v25")
    for j in range(4):
        m = (0x3 << (2 * j)); m |= m << 16
        g(f"s_mov_b32 vcc_lo, 0x{m:08x}")
        g(f"s_mov_b32 vcc_hi, 0x{m:08x}")
        g(f"v_cndmask_b32 v{MASK+j}, 0, v24, vcc")
    g(f"v_mov_b32 v{vM}, 0xff800000")
    g(f"v_mov_b32 v{vL}, 0")
    g(f"v_lshlrev_b32 v{vLds}, 2, v0")
    for j in range(4):
        g(f"v_mov_b32 v{DO+j}, 0")
    g("s_waitcnt vmcnt(20)")
    for n in range(4):
        m = (0xf << (4 * n)); m |= m << 16
        g(f"s_mov_b32 vcc_lo, 0x{m:08x}")
        g(f"s_mov_b32 vcc_hi, 0x{m:08x}")
        for j in range(4):
            g(f"v_cndmask_b32 v{BQ+4*n+j}, 0, v{BP0+j}, vcc")
    for st in range(5, 8):
        for n in range(4):
            load1(st, n, 0)

    def control(ph, nlev):
        g("s_bitcmp1_b64 s[60:61], s26")
        g(f"s_cbranch_scc0 L_noc{ph}")
        g("s_waitcnt lgkmcnt(0)")
        g("s_sub_i32 s48, s25, s39")
        g("s_add_u32 s39, s39, 8")
        g.label(f"L_noc{ph}")
        g("s_bitcmp1_b64 s[58:59], s26")
        g(f"s_cbranch_scc0 L_nos{ph}")
        g("s_mov_b32 s25, 1")
        g("s_atomic_add s25, s[22:23], 0x0 glc")
        g.label(f"L_nos{ph}")
        for i in range(nlev - 1, 0, -1):
            g(f"s_cmp_ge_i32 s48, {cuts[i-1]}")
            g(f"s_cbranch_scc1 L_{ph}{i}")
        g(f"s_cmp_lg_u32 s48, 0x{NEUT & 0xffffffff:08x}")
        g(f"s_cbranch_scc1 L_{ph}0")

    def kbody(thr):
        for st in range(8):
            tt = st % 4
            G = vG + st // 4
            g("s_waitcnt vmcnt(28)")
            for n in range(4):
                c = "0" if n == 0 else r4(DS)
                g(f"v_mfma_f32_16x16x32_bf16 {r4(DS)}, {r4(breg(st,n))}, {r4(BQ+4*n)}, {c}")
                if n < 2:
                    load1(st, n, thr[n])
            load1(st, 2, thr[2])
            g("s_nop 5")
            g(f"v_mov_b32_dpp v{vT}, v{DS} quad_perm:[0,0,0,0] {DPP}")
            g(f"v_mov_b32_dpp v{vTmp}, v{DS+2} quad_perm:[2,2,2,2] {DPP}")
            g("s_nop 0")
            g(f"v_add_f32_dpp v{vT}, v{DS+1}, v{vT} quad_perm:[1,1,1,1] {DPP}")
            g(f"v_add_f32_dpp v{vTmp}, v{DS+3}, v{vTmp} quad_perm:[3,3,3,3] {DPP}")
            if tt == 0:
                g(f"v_add_f32 v{G}, v{vT}, v{vTmp}")
            else:
                g(f"v_add_f32 v{vT}, v{vT}, v{vTmp}")
                g(f"v_cndmask_b32 v{G}, v{G}, v{vT}, s[{40+2*tt}:{41+2*tt}]")
            if tt == 3:
                g(f"v_max_f32 v{vM}, v{vM}, v{G}")
                g(f"ds_write_b32 v{vLds}, v{G} offset:{256*(st//4)}")
            load1(st, 3, thr[3])
        g(f"v_add_u32 v{vLds}, 512, v{vLds}")
        g("s_sub_u32 s26, s26, 1")
        g("s_cbranch_scc0 L_loopK")

    def vtop():
        g(f"v_add_u32 v{vLds}, 512, v{vLds}")
        g("s_waitcnt lgkmcnt(1)")
        g(f"v_fma_f32 v{vT}, v{vG}, s30, -v{vMC}")
        g(f"v_fma_f32 v{vP}, v{vG+1}, s30, -v{vMC}")
        g(f"v_exp_f32 v{vT}, v{vT}")
        g(f"v_exp_f32 v{vP}, v{vP}")
        g(f"ds_read_b32 v{vG}, v{vLds}")
        g(f"ds_read_b32 v{vG+1}, v{vLds} offset:256")
        g(f"ds_read_b32 v11, v{vLds}")
        g(f"v_cvt_pk_bf16_f32 v{vPK}, v{vT}, v{vT}")
        g(f"v_cvt_pk_bf16_f32 v{vPK+1}, v{vP}, v{vP}")
        g(f"v_add_f32 v{vL}, v{vL}, v{vT}")
        g(f"v_add_f32 v{vL}, v{vL}, v{vP}")

    def vtile(st, thr, wait):
        tt = st % 4
        PK = vPK + st // 4
        for n in range(4):
            bp = BP0 if n % 2 == 0 else BP1
            for j in range(4):
                g(f"v_and_b32_dpp v{bp+j}, v{PK}, v{MASK+j} row_newbcast:{4*n+tt} {DPP}")
            if n == 1:
                g(f"s_waitcnt vmcnt({wait})")
            if n > 0:
                pb = BP0 if (n - 1) % 2 == 0 else BP1
                g(f"v_mfma_f32_16x16x32_bf16 {r4(DO)}, {r4(breg(st,n-1))}, {r4(pb)}, {r4(DO)}")
                if thr:
                    load1(st, n - 1, thr[n - 1])
        if not thr:
            g("s_nop 0")
        g(f"v_mfma_f32_16x16x32_bf16 {r4(DO)}, {r4(breg(st,3))}, {r4(BP1)}, {r4(DO)}")
        if thr:
            load1(st, 3, thr[3])

    def vbody(thr):
        for st in range(8):
            vtile(st, thr, 28)
        g("s_sub_u32 s26, s26, 1")
        g("s_cmp_lg_u32 s26, 0")
        g("s_cbranch_scc1 L_loopV")

    g("s_mov_b32 s26, 63")
    if ksched:
        setmasks(ksched)
    g.raw(".p2align 3")
    g.label("L_loopK")
    g("s_cmp_lg_u32 s26, 0")
    g("s_cbranch_scc1 L_kgo")
    g("s_mov_b32 s16, s20")
    g("s_mov_b32 s17, s21")
    g("s_mov_b32 s29, 0")
    g(f"v_mov_b32 v{vOff}, v{vVoff}")
    g.label("L_kgo")
    if ksched:
        control("K", len(klevels))
    kbody(thrk)
    if ksched:
        for i, thr in enumerate(klevels):
            g("s_branch L_trans")
            g.raw(".p2align 3")
            g.label(f"L_K{i}")
            kbody(thr)
    g.label("L_trans")
    g(f"v_lshlrev_b32 v{vLds}, 2, v0")
    g(f"ds_read_b32 v{vG}, v{vLds}")
    g(f"ds_read_b32 v{vG+1}, v{vLds} offset:256")
    g(f"ds_read_b32 v11, v{vLds}")
    allreduce("v_max_f32", vM)
    g(f"v_mul_f32 v{vMC}, s30, v{vM}")
    g("s_mov_b32 s26, 63")
    if fb:
        setmasks(sched)
    g.raw(".p2align 3")
    g.label("L_loopV")
    vtop()
    if fb:
        control("V", len(levels))
    vbody(neutral)
    if fb:
        for i, thr in enumerate(levels):
            g("s_branch L_last")
            g.raw(".p2align 3")
            g.label(f"L_V{i}")
            vbody(thr)
    g.label("L_last")
    vtop()
    allreduce("v_add_f32", vL)
    g("v_and_b32 v13, 15, v0")
    g("v_lshrrev_b32 v14, 4, v0")
    g("v_lshlrev_b32 v14, 6, v14")
    g("v_lshlrev_b32 v13, 1, v13")
    g("v_add_u32 v13, v13, v14")
    g("s_lshl_b32 s28, 1, s38")
    g(f"v_mov_b32 v{vP}, s28")
    g(f"v_mov_b32 v{vT}, 0")
    for st in range(8):
        vtile(st, None, 28 - 4 * st)
    if stamp:
        g("s_waitcnt lgkmcnt(0)")
        g("s_memrealtime s[52:53]")
    g("s_nop 7")
    for j in range(4):
        src = vMC if j % 2 == 0 else vL
        g(f"v_cndmask_b32 v{BP0+j}, v{src}, v{DO+j}, s[40:41]")
    g(f"global_store_dwordx4 v{vVoff}, {r4(BP0)}, s[32:33] sc0 sc1")
    g("s_mov_b64 exec, 1")
    g("s_waitcnt vmcnt(0)")
    g(f"global_atomic_add v{vTmp2}, v{vT}, v{vP}, s[36:37] sc0 sc1")
    g("s_waitcnt vmcnt(0)")
    g(f"v_readfirstlane_b32 s28, v{vTmp2}")
    g("s_mov_b64 exec, -1")
    g("s_lshr_b32 s28, s28, s38")
    g("s_and_b32 s28, s28, 0xffff")
    g("s_cmp_lg_u32 s28, 1")
    g("s_cbranch_scc1 L_exit")
    g(f"global_load_dwordx4 {r4(PR)}, v{vVoff}, s[34:35] sc0 sc1")
    g("s_waitcnt vmcnt(0)")
    ra, rb, acc = BP0, PR, 32
    g(f"v_max_f32 v12, v{ra}, v{rb}")
    g(f"v_sub_f32 v14, v{ra}, v12")
    g(f"v_sub_f32 v15, v{rb}, v12")
    g("v_exp_f32 v14, v14")
    g("v_exp_f32 v15, v15")
    g("s_nop 1")
    for j in range(4):
        g(f"v_mul_f32_dpp v{acc+j}, v14, v{ra+j} row_newbcast:8 {DPP}")
    for j in range(4):
        g(f"v_mul_f32_dpp v{acc+4+j}, v15, v{rb+j} row_newbcast:8 {DPP}")
    for j in range(4):
        g(f"v_add_f32 v{acc+j}, v{acc+j}, v{acc+4+j}")
    g(f"v_rcp_f32 v12, v{acc+1}")
    g("s_nop 1")
    for j in range(4):
        g(f"v_mul_f32_dpp v{acc+j}, v12, v{acc+j} row_newbcast:8 {DPP}")
    for j in range(4):
        g(f"v_cvt_pk_bf16_f32 v{acc+j}, v{acc+j}, v{acc+j}")
    g("s_mov_b64 exec, s[40:41]")
    for j in range(4):
        g(f"global_store_short v13, v{32+j}, s[10:11] offset:{16*j}")
    g.label("L_exit")
    if stamp:
        g("s_mov_b64 exec, -1")
        g("s_waitcnt vmcnt(0)")
        g("s_memrealtime s[62:63]")
        g("s_getreg_b32 s54, hwreg(HW_REG_XCC_ID)")
        g("s_lshl_b32 s56, s2, 5")
        g("s_add_u32 s56, s56, 0x1000000")
        g("s_waitcnt lgkmcnt(0)")
        for i, sr in enumerate([50, 51, 52, 53, 54, 62, 56]):
            g(f"v_mov_b32 v{64+i}, s{sr}")
        g("global_store_dwordx4 v70, v[64:67], s[14:15]")
        g("global_store_dwordx2 v70, v[68:69], s[14:15] offset:16")
    g.label("L_end1")
    g("s_endpgm")
    g.raw('.section .rodata,"a"')
    g.raw(".p2align 6")
    g.raw(kd(k1, nv, 64))
    return g.text()


if __name__ == "__main__":
    ap = argparse.ArgumentParser()
    ap.add_argument("--thrk", default="20")
    ap.add_argument("--neutral", default="21.5")
    ap.add_argument("--lv", default="19,23")
    ap.add_argument("--klv", default=None)
    ap.add_argument("--cuts", default="4")
    ap.add_argument("--sched", default="")
    ap.add_argument("--ksched", default="")
    ap.add_argument("-Q", type=int, default=2)
    ap.add_argument("--stamp", action="store_true")
    ap.add_argument("-o", default="/dev/stdout")
    a = ap.parse_args()
    il = lambda s: tuple(int(x) for x in s.split(",")) if s else ()
    sc = il(a.sched); ks = il(a.ksched)
    for s_ in (sc, ks):
        ss = sorted(s_, reverse=True)
        assert all(x - a.Q >= 1 for x in ss) and all(ss[i] - a.Q >= ss[i + 1] for i in range(len(ss) - 1))
    open(a.o, "w").write(gen(pat(a.thrk), pat(a.neutral), [pat(x) for x in a.lv.split(",")], il(a.cuts), sc, a.Q,
                             stamp=a.stamp, ksched=ks, klevels=[pat(x) for x in a.klv.split(",")] if a.klv else None))
```

```python
import argparse
from gen import Gen, kd, f32bits, HEADER, NAME, CONST_C
from gen6 import pat

DPP = "row_mask:0xf bank_mask:0xf"
CTR = 0x200000


def gen(thrk, neutral, levels, cuts, sched, Q=2, flags="nt", lds=90000, stamp=False, ksched=(), klevels=None, pair=15):
    g = Gen()
    k1 = NAME + "_kernel"
    vOff, vVoff, vM, vMC, vL, vT, vP, vLds, vTmp, vTmp2 = 1, 2, 3, 4, 5, 6, 7, 8, 9, 10
    DS, DO, BP0, BP1, MASK, BQ = 12, 16, 20, 24, 28, 32
    vG, vPK = 48, 50
    PR = 52
    BUF = 56
    nv = BUF + 128
    NREC = 1 << 21
    fb = len(sched) + len(ksched) > 0
    NEUT = -0x40000000
    if klevels is None:
        klevels = levels

    def r4(b): return f"v[{b}:{b+3}]"
    def breg(st, n): return BUF + 16 * st + 4 * n
    fl = (" " + flags) if flags else ""

    IM = 0x1fc000 & ~(1 << pair)

    def load1(st, n, t):
        if n == 0:
            g(f"s_or_b32 s27, s29, 0x{((st & 1) << pair) | ((st >> 1) << 12):x}")
        if t: g(f"s_waitcnt vmcnt({t-1})")
        g(f"buffer_load_dwordx4 {r4(breg(st,n))}, v{vOff}, s[16:19], s27 offen offset:{n*1024}{fl}")
        if n == 3 and st == 7:
            g(f"s_or_b32 s29, s29, 0x{(~IM) & 0xffffffff:x}")
            g("s_add_u32 s29, s29, 1")
            g(f"s_and_b32 s29, s29, 0x{IM:x}")

    def allreduce(op, v):
        for ror in (1, 2, 4, 8):
            g("s_nop 1")
            g(f"{op}_dpp v{v}, v{v}, v{v} row_ror:{ror} {DPP}")
        for sw in ("16", "32"):
            g(f"v_mov_b32 v{vTmp}, v{v}")
            g("s_nop 1")
            g(f"v_permlane{sw}_swap_b32 v{v}, v{vTmp}")
            g("s_nop 1")
            g(f"{op} v{v}, v{v}, v{vTmp}")

    def setmasks(sc):
        ms = sum(1 << x for x in sc)
        mc = sum(1 << (x - Q) for x in sc)
        g(f"s_mov_b32 s58, 0x{ms & 0xffffffff:08x}")
        g(f"s_mov_b32 s59, 0x{ms >> 32:08x}")
        g(f"s_mov_b32 s60, 0x{mc & 0xffffffff:08x}")
        g(f"s_mov_b32 s61, 0x{mc >> 32:08x}")

    g.raw(HEADER.rstrip("\n"))
    g.raw(f"; @launch grid=(256,1,1) block=(64,1,1) lds={lds}")
    g.raw('.amdgcn_target "amdgcn-amd-amdhsa--gfx950"')
    g.raw(".text")
    g.raw(f".globl {k1}")
    g.raw(".p2align 8")
    g.raw(f".type {k1},@function")
    g.label(k1)
    g("s_load_dwordx8 s[4:11], s[0:1], 0")
    g("s_load_dwordx4 s[12:15], s[0:1], 32")
    if stamp:
        g("s_memrealtime s[50:51]")
    g("s_cmp_ge_u32 s2, 256")
    g("s_cbranch_scc1 L_end1")
    g("s_lshr_b32 s24, s2, 1")
    g("v_and_b32 v13, 15, v0")
    g("v_lshrrev_b32 v14, 4, v0")
    g("v_lshrrev_b32 v16, 2, v13")
    g("v_lshlrev_b32 v16, 8, v16")
    g("v_and_b32 v17, 3, v13")
    g("v_lshlrev_b32 v17, 4, v17")
    g("v_lshlrev_b32 v18, 6, v14")
    g("v_add_u32 v17, v17, v18")
    g(f"v_add_u32 v{vOff}, v16, v17")
    g(f"v_lshlrev_b32 v{vVoff}, 4, v0")
    g("s_lshl_b32 s28, s2, 21")
    g("s_mov_b32 s29, 0")
    g("s_lshl_b32 s31, s24, 8")
    g(f"s_mov_b32 s18, {NREC}")
    g("s_mov_b32 s19, 0x00020000")
    g("s_waitcnt lgkmcnt(0)")
    g("s_add_u32 s16, s6, s28")
    g("s_addc_u32 s17, s7, 0")
    g("s_and_b32 s17, s17, 0xffff")
    g("s_add_u32 s4, s4, s31")
    g("s_addc_u32 s5, s5, 0")
    g(f"global_load_dwordx4 {r4(BP0)}, v17, s[4:5]")
    for st in range(5):
        for n in range(4):
            load1(st, n, 0)
    g("s_add_u32 s20, s8, s28")
    g("s_addc_u32 s21, s9, 0")
    g("s_and_b32 s21, s21, 0xffff")
    g(f"s_mov_b32 s30, 0x{f32bits(CONST_C):08x}")
    g("s_add_u32 s10, s10, s31")
    g("s_addc_u32 s11, s11, 0")
    g("s_lshl_b32 s28, s2, 10")
    g("s_add_u32 s32, s14, s28")
    g("s_addc_u32 s33, s15, 0")
    g("s_xor_b32 s28, s28, 1024")
    g("s_add_u32 s34, s14, s28")
    g("s_addc_u32 s35, s15, 0")
    g("s_lshr_b32 s28, s2, 2")
    g("s_lshl_b32 s28, s28, 2")
    g("s_add_u32 s36, s12, s28")
    g("s_addc_u32 s37, s13, 0")
    g("s_and_b32 s38, s24, 1")
    g("s_lshl_b32 s38, s38, 4")
    if fb:
        g("s_lshr_b32 s28, s2, 3")
        g("s_lshl_b32 s28, s28, 12")
        g(f"s_add_u32 s28, s28, 0x{CTR:x}")
        g("s_add_u32 s22, s14, s28")
        g("s_addc_u32 s23, s15, 0")
        g("s_mov_b32 s39, 0")
        g("s_atomic_add s39, s[22:23], 0x0 glc")
        g(f"s_mov_b32 s48, 0x{NEUT & 0xffffffff:08x}")
    g("s_mov_b32 s40, 0x00ff00ff")
    g("s_mov_b32 s41, 0x00ff00ff")
    for tt in range(1, 4):
        m = 0x11111111 << tt
        g(f"s_mov_b32 s{40+2*tt}, 0x{m:08x}")
        g(f"s_mov_b32 s{41+2*tt}, 0x{m:08x}")
    g("v_and_b32 v24, 1, v13")
    g("v_lshlrev_b32 v24, 4, v24")
    g("v_mov_b32 v25, 0xffff")
    g("v_lshlrev_b32 v24, v24, v25")
    for j in range(4):
        m = (0x3 << (2 * j)); m |= m << 16
        g(f"s_mov_b32 vcc_lo, 0x{m:08x}")
        g(f"s_mov_b32 vcc_hi, 0x{m:08x}")
        g(f"v_cndmask_b32 v{MASK+j}, 0, v24, vcc")
    g(f"v_mov_b32 v{vM}, 0xff800000")
    g(f"v_mov_b32 v{vL}, 0")
    g(f"v_lshlrev_b32 v{vLds}, 2, v0")
    for j in range(4):
        g(f"v_mov_b32 v{DO+j}, 0")
    g("s_waitcnt vmcnt(20)")
    for n in range(4):
        m = (0xf << (4 * n)); m |= m << 16
        g(f"s_mov_b32 vcc_lo, 0x{m:08x}")
        g(f"s_mov_b32 vcc_hi, 0x{m:08x}")
        for j in range(4):
            g(f"v_cndmask_b32 v{BQ+4*n+j}, 0, v{BP0+j}, vcc")
    for st in range(5, 8):
        for n in range(4):
            load1(st, n, 0)

    def control(ph, nlev):
        g("s_bitcmp1_b64 s[60:61], s26")
        g(f"s_cbranch_scc0 L_noc{ph}")
        g("s_waitcnt lgkmcnt(0)")
        g("s_sub_i32 s48, s25, s39")
        g("s_add_u32 s39, s39, 8")
        g.label(f"L_noc{ph}")
        g("s_bitcmp1_b64 s[58:59], s26")
        g(f"s_cbranch_scc0 L_nos{ph}")
        g("s_mov_b32 s25, 1")
        g("s_atomic_add s25, s[22:23], 0x0 glc")
        g.label(f"L_nos{ph}")
        for i in range(nlev - 1, 0, -1):
            g(f"s_cmp_ge_i32 s48, {cuts[i-1]}")
            g(f"s_cbranch_scc1 L_{ph}{i}")
        g(f"s_cmp_lg_u32 s48, 0x{NEUT & 0xffffffff:08x}")
        g(f"s_cbranch_scc1 L_{ph}0")

    def kbody(thr):
        for st in range(8):
            tt = st % 4
            G = vG + st // 4
            g("s_waitcnt vmcnt(28)")
            for n in range(4):
                c = "0" if n == 0 else r4(DS)
                g(f"v_mfma_f32_16x16x32_bf16 {r4(DS)}, {r4(breg(st,n))}, {r4(BQ+4*n)}, {c}")
                if n < 2:
                    load1(st, n, thr[n])
            load1(st, 2, thr[2])
            g("s_nop 5")
            g(f"v_mov_b32_dpp v{vT}, v{DS} quad_perm:[0,0,0,0] {DPP}")
            g(f"v_mov_b32_dpp v{vTmp}, v{DS+2} quad_perm:[2,2,2,2] {DPP}")
            g("s_nop 0")
            g(f"v_add_f32_dpp v{vT}, v{DS+1}, v{vT} quad_perm:[1,1,1,1] {DPP}")
            g(f"v_add_f32_dpp v{vTmp}, v{DS+3}, v{vTmp} quad_perm:[3,3,3,3] {DPP}")
            if tt == 0:
                g(f"v_add_f32 v{G}, v{vT}, v{vTmp}")
            else:
                g(f"v_add_f32 v{vT}, v{vT}, v{vTmp}")
                g(f"v_cndmask_b32 v{G}, v{G}, v{vT}, s[{40+2*tt}:{41+2*tt}]")
            if tt == 3:
                g(f"v_max_f32 v{vM}, v{vM}, v{G}")
                g(f"ds_write_b32 v{vLds}, v{G} offset:{256*(st//4)}")
            load1(st, 3, thr[3])
        g(f"v_add_u32 v{vLds}, 512, v{vLds}")
        g("s_sub_u32 s26, s26, 1")
        g("s_cbranch_scc0 L_loopK")

    def vtop():
        g(f"v_add_u32 v{vLds}, 512, v{vLds}")
        g("s_waitcnt lgkmcnt(1)")
        g(f"v_fma_f32 v{vT}, v{vG}, s30, -v{vMC}")
        g(f"v_fma_f32 v{vP}, v{vG+1}, s30, -v{vMC}")
        g(f"v_exp_f32 v{vT}, v{vT}")
        g(f"v_exp_f32 v{vP}, v{vP}")
        g(f"ds_read_b32 v{vG}, v{vLds}")
        g(f"ds_read_b32 v{vG+1}, v{vLds} offset:256")
        g(f"ds_read_b32 v11, v{vLds}")
        g(f"v_cvt_pk_bf16_f32 v{vPK}, v{vT}, v{vT}")
        g(f"v_cvt_pk_bf16_f32 v{vPK+1}, v{vP}, v{vP}")
        g(f"v_add_f32 v{vL}, v{vL}, v{vT}")
        g(f"v_add_f32 v{vL}, v{vL}, v{vP}")

    def vtile(st, thr, wait):
        tt = st % 4
        PK = vPK + st // 4
        for n in range(4):
            bp = BP0 if n % 2 == 0 else BP1
            for j in range(4):
                g(f"v_and_b32_dpp v{bp+j}, v{PK}, v{MASK+j} row_newbcast:{4*n+tt} {DPP}")
            if n == 1:
                g(f"s_waitcnt vmcnt({wait})")
            if n > 0:
                pb = BP0 if (n - 1) % 2 == 0 else BP1
                g(f"v_mfma_f32_16x16x32_bf16 {r4(DO)}, {r4(breg(st,n-1))}, {r4(pb)}, {r4(DO)}")
                if thr:
                    load1(st, n - 1, thr[n - 1])
        if not thr:
            g("s_nop 0")
        g(f"v_mfma_f32_16x16x32_bf16 {r4(DO)}, {r4(breg(st,3))}, {r4(BP1)}, {r4(DO)}")
        if thr:
            load1(st, 3, thr[3])

    def vbody(thr):
        for st in range(8):
            vtile(st, thr, 28)
        g("s_sub_u32 s26, s26, 1")
        g("s_cmp_lg_u32 s26, 0")
        g("s_cbranch_scc1 L_loopV")

    g("s_mov_b32 s26, 63")
    if ksched:
        setmasks(ksched)
    g.raw(".p2align 3")
    g.label("L_loopK")
    g("s_cmp_lg_u32 s26, 0")
    g("s_cbranch_scc1 L_kgo")
    g("s_mov_b32 s16, s20")
    g("s_mov_b32 s17, s21")
    g("s_mov_b32 s29, 0")
    g(f"v_mov_b32 v{vOff}, v{vVoff}")
    g.label("L_kgo")
    if ksched:
        control("K", len(klevels))
    kbody(thrk)
    if ksched:
        for i, thr in enumerate(klevels):
            g("s_branch L_trans")
            g.raw(".p2align 3")
            g.label(f"L_K{i}")
            kbody(thr)
    g.label("L_trans")
    g(f"v_lshlrev_b32 v{vLds}, 2, v0")
    g(f"ds_read_b32 v{vG}, v{vLds}")
    g(f"ds_read_b32 v{vG+1}, v{vLds} offset:256")
    g(f"ds_read_b32 v11, v{vLds}")
    allreduce("v_max_f32", vM)
    g(f"v_mul_f32 v{vMC}, s30, v{vM}")
    g("s_mov_b32 s26, 63")
    if fb:
        setmasks(sched)
    g.raw(".p2align 3")
    g.label("L_loopV")
    vtop()
    if fb:
        control("V", len(levels))
    vbody(neutral)
    if fb:
        for i, thr in enumerate(levels):
            g("s_branch L_last")
            g.raw(".p2align 3")
            g.label(f"L_V{i}")
            vbody(thr)
    g.label("L_last")
    vtop()
    allreduce("v_add_f32", vL)
    g("v_and_b32 v13, 15, v0")
    g("v_lshrrev_b32 v14, 4, v0")
    g("v_lshlrev_b32 v14, 6, v14")
    g("v_lshlrev_b32 v13, 1, v13")
    g("v_add_u32 v13, v13, v14")
    g("s_lshl_b32 s28, 1, s38")
    g(f"v_mov_b32 v{vP}, s28")
    g(f"v_mov_b32 v{vT}, 0")
    for st in range(8):
        vtile(st, None, 28 - 4 * st)
    if stamp:
        g("s_waitcnt lgkmcnt(0)")
        g("s_memrealtime s[52:53]")
    g("s_nop 7")
    for j in range(4):
        src = vMC if j % 2 == 0 else vL
        g(f"v_cndmask_b32 v{BP0+j}, v{src}, v{DO+j}, s[40:41]")
    g(f"global_store_dwordx4 v{vVoff}, {r4(BP0)}, s[32:33] sc0 sc1")
    g("s_mov_b64 exec, 1")
    g("s_waitcnt vmcnt(0)")
    g(f"global_atomic_add v{vTmp2}, v{vT}, v{vP}, s[36:37] sc0 sc1")
    g("s_waitcnt vmcnt(0)")
    g(f"v_readfirstlane_b32 s28, v{vTmp2}")
    g("s_mov_b64 exec, -1")
    g("s_lshr_b32 s28, s28, s38")
    g("s_and_b32 s28, s28, 0xffff")
    g("s_cmp_lg_u32 s28, 1")
    g("s_cbranch_scc1 L_exit")
    g(f"global_load_dwordx4 {r4(PR)}, v{vVoff}, s[34:35] sc0 sc1")
    g("s_waitcnt vmcnt(0)")
    ra, rb, acc = BP0, PR, 32
    g(f"v_max_f32 v12, v{ra}, v{rb}")
    g(f"v_sub_f32 v14, v{ra}, v12")
    g(f"v_sub_f32 v15, v{rb}, v12")
    g("v_exp_f32 v14, v14")
    g("v_exp_f32 v15, v15")
    g("s_nop 1")
    for j in range(4):
        g(f"v_mul_f32_dpp v{acc+j}, v14, v{ra+j} row_newbcast:8 {DPP}")
    for j in range(4):
        g(f"v_mul_f32_dpp v{acc+4+j}, v15, v{rb+j} row_newbcast:8 {DPP}")
    for j in range(4):
        g(f"v_add_f32 v{acc+j}, v{acc+j}, v{acc+4+j}")
    g(f"v_rcp_f32 v12, v{acc+1}")
    g("s_nop 1")
    for j in range(4):
        g(f"v_mul_f32_dpp v{acc+j}, v12, v{acc+j} row_newbcast:8 {DPP}")
    for j in range(4):
        g(f"v_cvt_pk_bf16_f32 v{acc+j}, v{acc+j}, v{acc+j}")
    g("s_mov_b64 exec, s[40:41]")
    for j in range(4):
        g(f"global_store_short v13, v{32+j}, s[10:11] offset:{16*j}")
    g.label("L_exit")
    if stamp:
        g("s_mov_b64 exec, -1")
        g("s_waitcnt vmcnt(0)")
        g("s_memrealtime s[62:63]")
        g("s_getreg_b32 s54, hwreg(HW_REG_XCC_ID)")
        g("s_lshl_b32 s56, s2, 5")
        g("s_add_u32 s56, s56, 0x1000000")
        g("s_waitcnt lgkmcnt(0)")
        for i, sr in enumerate([50, 51, 52, 53, 54, 62, 56]):
            g(f"v_mov_b32 v{64+i}, s{sr}")
        g("global_store_dwordx4 v70, v[64:67], s[14:15]")
        g("global_store_dwordx2 v70, v[68:69], s[14:15] offset:16")
    g.label("L_end1")
    g("s_endpgm")
    g.raw('.section .rodata,"a"')
    g.raw(".p2align 6")
    g.raw(kd(k1, nv, 64))
    return g.text()


if __name__ == "__main__":
    ap = argparse.ArgumentParser()
    ap.add_argument("--thrk", default="20")
    ap.add_argument("--neutral", default="21.5")
    ap.add_argument("--lv", default="19,23")
    ap.add_argument("--klv", default=None)
    ap.add_argument("--cuts", default="4")
    ap.add_argument("--sched", default="")
    ap.add_argument("--ksched", default="")
    ap.add_argument("-Q", type=int, default=2)
    ap.add_argument("--stamp", action="store_true")
    ap.add_argument("--pair", type=int, default=15)
    ap.add_argument("-o", default="/dev/stdout")
    a = ap.parse_args()
    il = lambda s: tuple(int(x) for x in s.split(",")) if s else ()
    sc = il(a.sched); ks = il(a.ksched)
    for s_ in (sc, ks):
        ss = sorted(s_, reverse=True)
        assert all(x - a.Q >= 1 for x in ss) and all(ss[i] - a.Q >= ss[i + 1] for i in range(len(ss) - 1))
    open(a.o, "w").write(gen(pat(a.thrk), pat(a.neutral), [pat(x) for x in a.lv.split(",")], il(a.cuts), sc, a.Q,
                             stamp=a.stamp, ksched=ks, klevels=[pat(x) for x in a.klv.split(",")] if a.klv else None, pair=a.pair))
```

```python
import argparse
from gen import Gen, kd, f32bits, HEADER, NAME, CONST_C
from gen6 import pat

DPP = "row_mask:0xf bank_mask:0xf"
CTR = 0x200000


def gen(thrk, neutral, levels, cuts, sched, Q=2, flags="nt", lds=90000, stamp=False, ksched=(), klevels=None, pair=15, thrp=0, first=5, cs=(0, 4, 1, 5, 12, 3), lstride=256, tail1=False, ldat=6, ann=0):
    g = Gen()
    k1 = NAME + "_kernel"
    vOff, vVoff, vM, vMC, vL, vT, vP, vLds, vTmp, vTmp2 = 1, 2, 3, 4, 5, 6, 7, 8, 9, 10
    DS, DO, BP0, BP1, MASK, BQ = 12, 16, 20, 24, 28, 32
    vG, vPK = 48, 50
    PR = 52
    BUF = 56
    nv = BUF + 128
    NREC = 1 << 21
    fb = len(sched) + len(ksched) > 0
    NEUT = -0x40000000
    if klevels is None:
        klevels = levels

    def r4(b): return f"v[{b}:{b+3}]"
    def breg(st, n): return BUF + 16 * st + 4 * n
    fl = (" " + flags) if flags else ""

    IM = 0x1fc000 & ~(1 << pair)

    def load1(st, n, t):
        if n == 0:
            g(f"s_or_b32 s27, s29, 0x{((st & 1) << pair) | ((st >> 1) << 12):x}")
        if t: g(f"s_waitcnt vmcnt({t-1})")
        g(f"buffer_load_dwordx4 {r4(breg(st,n))}, v{vOff}, s[16:19], s27 offen offset:{n*1024}{fl}")
        if n == 3 and st == 7:
            g(f"s_or_b32 s29, s29, 0x{(~IM) & 0xffffffff:x}")
            g("s_add_u32 s29, s29, 1")
            g(f"s_and_b32 s29, s29, 0x{IM:x}")

    def allreduce(op, v):
        for ror in (1, 2, 4, 8):
            g("s_nop 1")
            g(f"{op}_dpp v{v}, v{v}, v{v} row_ror:{ror} {DPP}")
        for sw in ("16", "32"):
            g(f"v_mov_b32 v{vTmp}, v{v}")
            g("s_nop 1")
            g(f"v_permlane{sw}_swap_b32 v{v}, v{vTmp}")
            g("s_nop 1")
            g(f"{op} v{v}, v{v}, v{vTmp}")

    def setmasks(sc):
        ms = sum(1 << x for x in sc)
        g(f"s_mov_b32 s58, 0x{ms & 0xffffffff:08x}")
        g(f"s_mov_b32 s59, 0x{ms >> 32:08x}")

    g.raw(HEADER.rstrip("\n"))
    g.raw(f"; @launch grid=(256,1,1) block=(64,1,1) lds={lds}")
    g.raw('.amdgcn_target "amdgcn-amd-amdhsa--gfx950"')
    g.raw(".text")
    g.raw(f".globl {k1}")
    g.raw(".p2align 8")
    g.raw(f".type {k1},@function")
    g.label(k1)
    g("s_load_dwordx8 s[4:11], s[0:1], 0")
    g("s_load_dwordx4 s[12:15], s[0:1], 32")
    if stamp:
        g("s_memrealtime s[50:51]")
    g("s_cmp_ge_u32 s2, 256")
    g("s_cbranch_scc1 L_end1")
    g("s_lshr_b32 s24, s2, 1")
    g("v_and_b32 v13, 15, v0")
    g("v_lshrrev_b32 v14, 4, v0")
    g("v_lshrrev_b32 v16, 2, v13")
    g("v_lshlrev_b32 v16, 8, v16")
    g("v_and_b32 v17, 3, v13")
    g("v_lshlrev_b32 v17, 4, v17")
    g("v_lshlrev_b32 v18, 6, v14")
    g("v_add_u32 v17, v17, v18")
    g(f"v_add_u32 v{vOff}, v16, v17")
    g(f"v_lshlrev_b32 v{vVoff}, 4, v0")
    g("s_lshl_b32 s28, s2, 21")
    g("s_mov_b32 s29, 0")
    g("s_lshl_b32 s31, s24, 8")
    g(f"s_mov_b32 s18, {NREC}")
    g("s_mov_b32 s19, 0x00020000")
    g("s_waitcnt lgkmcnt(0)")
    g("s_add_u32 s16, s6, s28")
    g("s_addc_u32 s17, s7, 0")
    g("s_and_b32 s17, s17, 0xffff")
    g("s_add_u32 s4, s4, s31")
    g("s_addc_u32 s5, s5, 0")
    g(f"global_load_dwordx4 {r4(BP0)}, v17, s[4:5]")
    for st in range(first):
        for n in range(4):
            load1(st, n, 0)
    g("s_add_u32 s20, s8, s28")
    g("s_addc_u32 s21, s9, 0")
    g("s_and_b32 s21, s21, 0xffff")
    g(f"s_mov_b32 s30, 0x{f32bits(CONST_C):08x}")
    g("s_add_u32 s10, s10, s31")
    g("s_addc_u32 s11, s11, 0")
    g("s_lshl_b32 s28, s2, 10")
    g("s_add_u32 s32, s14, s28")
    g("s_addc_u32 s33, s15, 0")
    g("s_xor_b32 s28, s28, 1024")
    g("s_add_u32 s34, s14, s28")
    g("s_addc_u32 s35, s15, 0")
    g("s_lshr_b32 s28, s2, 2")
    g("s_lshl_b32 s28, s28, 2")
    g("s_add_u32 s36, s12, s28")
    g("s_addc_u32 s37, s13, 0")
    g("s_and_b32 s38, s24, 1")
    g("s_lshl_b32 s38, s38, 4")
    if tail1:
        for j in range(4):
            g(f"v_mov_b32 v{PR+j}, -1")
        g(f"global_store_dwordx4 v{vVoff}, {r4(PR)}, s[32:33] sc0 sc1")
    if fb:
        NS = len(sched) + len(ksched)
        assert NS <= 6 and len(cs) >= NS
        g(f"s_add_u32 s22, s14, 0x{CTR:x}")
        g("s_addc_u32 s23, s15, 0")
        g(f"s_cmp_ge_u32 s2, {32*NS}")
        g("s_cbranch_scc1 L_noinit")
        g(f"s_mul_i32 s28, s2, {lstride}")
        g(f"v_mov_b32 v{vTmp}, s28")
        g(f"v_mov_b32 v{vTmp2}, 0x1000")
        g("s_mov_b64 exec, 1")
        g(f"global_store_dword v{vTmp}, v{vTmp2}, s[22:23] sc0 sc1")
        g("s_mov_b64 exec, -1")
        g.label("L_noinit")
        g(f"s_mov_b32 s39, 0x{sum(c << (5*k) for k, c in enumerate(cs[:6])):x}")
        g("s_lshr_b32 s49, s2, 3")
        g("s_and_b32 s57, s2, 7")
        g("s_mov_b32 s25, 0")
        g("s_mov_b32 s48, 0")
    g("s_mov_b32 s40, 0x00ff00ff")
    g("s_mov_b32 s41, 0x00ff00ff")
    for tt in range(1, 4):
        m = 0x11111111 << tt
        g(f"s_mov_b32 s{40+2*tt}, 0x{m:08x}")
        g(f"s_mov_b32 s{41+2*tt}, 0x{m:08x}")
    g("v_and_b32 v24, 1, v13")
    g("v_lshlrev_b32 v24, 4, v24")
    g("v_mov_b32 v25, 0xffff")
    g("v_lshlrev_b32 v24, v24, v25")
    for j in range(4):
        m = (0x3 << (2 * j)); m |= m << 16
        g(f"s_mov_b32 vcc_lo, 0x{m:08x}")
        g(f"s_mov_b32 vcc_hi, 0x{m:08x}")
        g(f"v_cndmask_b32 v{MASK+j}, 0, v24, vcc")
    g(f"v_mov_b32 v{vM}, 0xff800000")
    g(f"v_mov_b32 v{vL}, 0")
    g(f"v_lshlrev_b32 v{vLds}, 2, v0")
    for j in range(4):
        g(f"v_mov_b32 v{DO+j}, 0")
    g(f"s_waitcnt vmcnt({4*first})")
    for n in range(4):
        m = (0xf << (4 * n)); m |= m << 16
        g(f"s_mov_b32 vcc_lo, 0x{m:08x}")
        g(f"s_mov_b32 vcc_hi, 0x{m:08x}")
        for j in range(4):
            g(f"v_cndmask_b32 v{BQ+4*n+j}, 0, v{BP0+j}, vcc")
    for st in range(first, 8):
        for n in range(4):
            load1(st, n, thrp)

    def control(ph, nlev):
        g("s_cmp_ge_u32 s25, 0x1000")
        g("s_cselect_b32 s48, s25, s48")
        g("s_bitcmp1_b64 s[58:59], s26")
        g(f"s_cbranch_scc0 L_nos{ph}")
        g("s_and_b32 s28, s39, 31")
        g("s_lshr_b32 s39, s39, 5")
        g("s_mul_i32 s28, s28, s57")
        g("s_add_u32 s28, s28, s49")
        g("s_and_b32 s28, s28, 31")
        g(f"s_mul_i32 s28, s28, {lstride}")
        g("s_waitcnt lgkmcnt(0)")
        g("s_mov_b32 s25, 1")
        g("s_atomic_add s25, s[22:23], s28 glc")
        g(f"s_add_u32 s22, s22, {32*lstride}")
        g("s_addc_u32 s23, s23, 0")
        g.label(f"L_nos{ph}")
        for i in range(nlev - 1, 0, -1):
            g(f"s_cmp_ge_u32 s48, 0x{0x1000 + cuts[i-1]:x}")
            g(f"s_cbranch_scc1 L_{ph}{i}")
        g("s_cmp_lg_u32 s48, 0")
        g(f"s_cbranch_scc1 L_{ph}0")

    def kbody(thr):
        for st in range(8):
            tt = st % 4
            G = vG + st // 4
            g("s_waitcnt vmcnt(28)")
            for n in range(4):
                c = "0" if n == 0 else r4(DS)
                g(f"v_mfma_f32_16x16x32_bf16 {r4(DS)}, {r4(breg(st,n))}, {r4(BQ+4*n)}, {c}")
                if n < 2:
                    load1(st, n, thr[n])
            load1(st, 2, thr[2])
            g("s_nop 5")
            g(f"v_mov_b32_dpp v{vT}, v{DS} quad_perm:[0,0,0,0] {DPP}")
            g(f"v_mov_b32_dpp v{vTmp}, v{DS+2} quad_perm:[2,2,2,2] {DPP}")
            g("s_nop 0")
            g(f"v_add_f32_dpp v{vT}, v{DS+1}, v{vT} quad_perm:[1,1,1,1] {DPP}")
            g(f"v_add_f32_dpp v{vTmp}, v{DS+3}, v{vTmp} quad_perm:[3,3,3,3] {DPP}")
            if tt == 0:
                g(f"v_add_f32 v{G}, v{vT}, v{vTmp}")
            else:
                g(f"v_add_f32 v{vT}, v{vT}, v{vTmp}")
                g(f"v_cndmask_b32 v{G}, v{G}, v{vT}, s[{40+2*tt}:{41+2*tt}]")
            if tt == 3:
                g(f"v_max_f32 v{vM}, v{vM}, v{G}")
                g(f"ds_write_b32 v{vLds}, v{G} offset:{256*(st//4)}")
            load1(st, 3, thr[3])
        g(f"v_add_u32 v{vLds}, 512, v{vLds}")
        g("s_sub_u32 s26, s26, 1")
        g("s_cbranch_scc0 L_loopK")

    def vtop():
        g(f"v_add_u32 v{vLds}, 512, v{vLds}")
        g("s_waitcnt lgkmcnt(1)")
        g(f"v_fma_f32 v{vT}, v{vG}, s30, -v{vMC}")
        g(f"v_fma_f32 v{vP}, v{vG+1}, s30, -v{vMC}")
        g(f"v_exp_f32 v{vT}, v{vT}")
        g(f"v_exp_f32 v{vP}, v{vP}")
        g(f"ds_read_b32 v{vG}, v{vLds}")
        g(f"ds_read_b32 v{vG+1}, v{vLds} offset:256")
        g(f"ds_read_b32 v11, v{vLds}")
        g(f"v_cvt_pk_bf16_f32 v{vPK}, v{vT}, v{vT}")
        g(f"v_cvt_pk_bf16_f32 v{vPK+1}, v{vP}, v{vP}")
        g(f"v_add_f32 v{vL}, v{vL}, v{vT}")
        g(f"v_add_f32 v{vL}, v{vL}, v{vP}")

    def vtile(st, thr, wait):
        tt = st % 4
        PK = vPK + st // 4
        for n in range(4):
            bp = BP0 if n % 2 == 0 else BP1
            for j in range(4):
                g(f"v_and_b32_dpp v{bp+j}, v{PK}, v{MASK+j} row_newbcast:{4*n+tt} {DPP}")
            if n == 1:
                g(f"s_waitcnt vmcnt({wait})")
            if n > 0:
                pb = BP0 if (n - 1) % 2 == 0 else BP1
                g(f"v_mfma_f32_16x16x32_bf16 {r4(DO)}, {r4(breg(st,n-1))}, {r4(pb)}, {r4(DO)}")
                if thr:
                    load1(st, n - 1, thr[n - 1])
        if not thr:
            g("s_nop 0")
        g(f"v_mfma_f32_16x16x32_bf16 {r4(DO)}, {r4(breg(st,3))}, {r4(BP1)}, {r4(DO)}")
        if thr:
            load1(st, 3, thr[3])

    def vbody(thr):
        for st in range(8):
            vtile(st, thr, 28)
        g("s_sub_u32 s26, s26, 1")
        g("s_cmp_lg_u32 s26, 0")
        g("s_cbranch_scc1 L_loopV")

    g("s_mov_b32 s26, 63")
    if tail1 == 4:
        g("s_mul_i32 s3, s24, 7")
        g("s_lshr_b32 s3, s3, 4")
    if ksched:
        setmasks(ksched)
    g.raw(".p2align 3")
    g.label("L_loopK")
    g("s_cmp_lg_u32 s26, 0")
    g("s_cbranch_scc1 L_kgo")
    g("s_mov_b32 s16, s20")
    g("s_mov_b32 s17, s21")
    g("s_mov_b32 s29, 0")
    g(f"v_mov_b32 v{vOff}, v{vVoff}")
    g.label("L_kgo")
    if tail1 == 4:
        g("s_cmp_lg_u32 s26, s3")
        g("s_cbranch_scc1 L_noann")
        g("s_lshl_b32 s31, 1, s38")
        g("s_atomic_add s31, s[36:37], 0x0 glc")
        g.label("L_noann")
    if ksched:
        control("K", len(klevels))
    kbody(thrk)
    if ksched:
        for i, thr in enumerate(klevels):
            g("s_branch L_trans")
            g.raw(".p2align 3")
            g.label(f"L_K{i}")
            kbody(thr)
    g.label("L_trans")
    g(f"v_lshlrev_b32 v{vLds}, 2, v0")
    g(f"ds_read_b32 v{vG}, v{vLds}")
    g(f"ds_read_b32 v{vG+1}, v{vLds} offset:256")
    g(f"ds_read_b32 v11, v{vLds}")
    allreduce("v_max_f32", vM)
    g(f"v_mul_f32 v{vMC}, s30, v{vM}")
    g("s_mov_b32 s26, 63")
    if fb:
        setmasks(sched)
    g.raw(".p2align 3")
    g.label("L_loopV")
    vtop()
    if tail1 == 3 and ann:
        g(f"s_cmp_lg_u32 s26, {ann}")
        g("s_cbranch_scc1 L_noann")
        g("s_lshl_b32 s31, 1, s38")
        g("s_atomic_add s31, s[36:37], 0x0 glc")
        g.label("L_noann")
    if fb:
        control("V", len(levels))
    vbody(neutral)
    if fb:
        for i, thr in enumerate(levels):
            g("s_branch L_last")
            g.raw(".p2align 3")
            g.label(f"L_V{i}")
            vbody(thr)
    g.label("L_last")
    if stamp:
        g("s_memrealtime s[60:61]")
    vtop()
    if tail1 == 3 and not ann:
        g("s_lshl_b32 s31, 1, s38")
        g("s_atomic_add s31, s[36:37], 0x0 glc")
    allreduce("v_add_f32", vL)
    g("v_and_b32 v13, 15, v0")
    g("v_lshrrev_b32 v14, 4, v0")
    g("v_lshlrev_b32 v14, 6, v14")
    g("v_lshlrev_b32 v13, 1, v13")
    g("v_add_u32 v13, v13, v14")
    g("s_lshl_b32 s28, 1, s38")
    g(f"v_mov_b32 v{vP}, s28")
    g(f"v_mov_b32 v{vT}, 0")
    for st in range(8):
        if tail1 >= 3 and st == ldat:
            g("s_waitcnt lgkmcnt(0)")
            g(f"global_load_dwordx4 {r4(PR)}, v{vVoff}, s[34:35] sc0 sc1")
            g("s_lshr_b32 s31, s31, s38")
            g("s_and_b32 s31, s31, 0xffff")
        vtile(st, None, 28 - 4 * st + (1 if tail1 >= 3 and st >= ldat else 0))
    if stamp:
        g("s_waitcnt lgkmcnt(0)")
        g("s_memrealtime s[52:53]")
    g("s_nop 7")
    for j in range(4):
        src = vMC if j % 2 == 0 else vL
        g(f"v_cndmask_b32 v{BP0+j}, v{src}, v{DO+j}, s[40:41]")
    if tail1 >= 3:
        g("s_cmp_eq_u32 s31, 1")
        g("s_cbranch_scc1 L_second")
        for j in range(4):
            g(f"v_min_u32 v{BP0+j}, -2, v{BP0+j}")
        g(f"global_store_dwordx4 v{vVoff}, {r4(BP0)}, s[32:33] sc0 sc1")
        g("s_branch L_exit")
        g.label("L_poll")
        g(f"global_load_dwordx4 {r4(PR)}, v{vVoff}, s[34:35] sc0 sc1")
        g.label("L_second")
        g("s_waitcnt vmcnt(0)")
        g(f"v_max3_u32 v12, v{PR}, v{PR+1}, v{PR+2}")
        g(f"v_max_u32 v12, v12, v{PR+3}")
        g("v_cmp_eq_u32 vcc, -1, v12")
        g("s_cbranch_vccnz L_poll")
    elif tail1:
        for j in range(4):
            g(f"v_min_u32 v{BP0+j}, -2, v{BP0+j}")
        g(f"global_store_dwordx4 v{vVoff}, {r4(BP0)}, s[32:33] sc0 sc1")
        g("s_mov_b64 exec, 1")
        g(f"global_atomic_add v{vTmp2}, v{vT}, v{vP}, s[36:37] sc0 sc1")
        g("s_mov_b64 exec, -1")
        if tail1 == 1:
            g(f"global_load_dwordx4 {r4(PR)}, v{vVoff}, s[34:35] sc0 sc1")
        g("s_waitcnt vmcnt(0)")
        g(f"v_readfirstlane_b32 s28, v{vTmp2}")
        if tail1 == 1:
            g(f"v_max3_u32 v12, v{PR}, v{PR+1}, v{PR+2}")
            g(f"v_max_u32 v12, v12, v{PR+3}")
        g("s_lshr_b32 s28, s28, s38")
        g("s_and_b32 s28, s28, 0xffff")
        g("s_cmp_lg_u32 s28, 1")
        g("s_cbranch_scc1 L_exit")
        if tail1 == 1:
            g("v_cmp_eq_u32 vcc, -1, v12")
            g("s_cbranch_vccz L_comb")
        g.label("L_poll")
        g(f"global_load_dwordx4 {r4(PR)}, v{vVoff}, s[34:35] sc0 sc1")
        g("s_waitcnt vmcnt(0)")
        g(f"v_max3_u32 v12, v{PR}, v{PR+1}, v{PR+2}")
        g(f"v_max_u32 v12, v12, v{PR+3}")
        g("v_cmp_eq_u32 vcc, -1, v12")
        g("s_cbranch_vccnz L_poll")
        g.label("L_comb")
    else:
        g(f"global_store_dwordx4 v{vVoff}, {r4(BP0)}, s[32:33] sc0 sc1")
        g("s_mov_b64 exec, 1")
        g("s_waitcnt vmcnt(0)")
        g(f"global_atomic_add v{vTmp2}, v{vT}, v{vP}, s[36:37] sc0 sc1")
        g("s_waitcnt vmcnt(0)")
        g(f"v_readfirstlane_b32 s28, v{vTmp2}")
        g("s_mov_b64 exec, -1")
        g("s_lshr_b32 s28, s28, s38")
        g("s_and_b32 s28, s28, 0xffff")
        g("s_cmp_lg_u32 s28, 1")
        g("s_cbranch_scc1 L_exit")
        g(f"global_load_dwordx4 {r4(PR)}, v{vVoff}, s[34:35] sc0 sc1")
        g("s_waitcnt vmcnt(0)")
    ra, rb, acc = BP0, PR, 32
    g(f"v_max_f32 v12, v{ra}, v{rb}")
    g(f"v_sub_f32 v14, v{ra}, v12")
    g(f"v_sub_f32 v15, v{rb}, v12")
    g("v_exp_f32 v14, v14")
    g("v_exp_f32 v15, v15")
    g("s_nop 1")
    for j in range(4):
        g(f"v_mul_f32_dpp v{acc+j}, v14, v{ra+j} row_newbcast:8 {DPP}")
    for j in range(4):
        g(f"v_mul_f32_dpp v{acc+4+j}, v15, v{rb+j} row_newbcast:8 {DPP}")
    for j in range(4):
        g(f"v_add_f32 v{acc+j}, v{acc+j}, v{acc+4+j}")
    g(f"v_rcp_f32 v12, v{acc+1}")
    g("s_nop 1")
    for j in range(4):
        g(f"v_mul_f32_dpp v{acc+j}, v12, v{acc+j} row_newbcast:8 {DPP}")
    for j in range(4):
        g(f"v_cvt_pk_bf16_f32 v{acc+j}, v{acc+j}, v{acc+j}")
    g("s_mov_b64 exec, s[40:41]")
    for j in range(4):
        g(f"global_store_short v13, v{32+j}, s[10:11] offset:{16*j}")
    g.label("L_exit")
    if stamp:
        g("s_mov_b64 exec, -1")
        g("s_waitcnt vmcnt(0)")
        g("s_memrealtime s[62:63]")
        g("s_getreg_b32 s54, hwreg(HW_REG_XCC_ID)")
        g("s_lshl_b32 s56, s2, 5")
        g("s_add_u32 s56, s56, 0x1000000")
        g("s_waitcnt lgkmcnt(0)")
        for i, sr in enumerate([50, 51, 52, 53, 54, 62, 56]):
            g(f"v_mov_b32 v{64+i}, s{sr}")
        g("global_store_dwordx4 v70, v[64:67], s[14:15]")
        g("global_store_dwordx2 v70, v[68:69], s[14:15] offset:16")
        g("v_mov_b32 v71, s60")
        g("global_store_dword v70, v71, s[14:15] offset:24")
    g.label("L_end1")
    g("s_endpgm")
    g.raw('.section .rodata,"a"')
    g.raw(".p2align 6")
    g.raw(kd(k1, nv, 64))
    return g.text()


if __name__ == "__main__":
    ap = argparse.ArgumentParser()
    ap.add_argument("--thrk", default="20")
    ap.add_argument("--neutral", default="21.5")
    ap.add_argument("--lv", default="19,23")
    ap.add_argument("--klv", default=None)
    ap.add_argument("--cuts", default="4")
    ap.add_argument("--sched", default="")
    ap.add_argument("--ksched", default="")
    ap.add_argument("-Q", type=int, default=2)
    ap.add_argument("--stamp", action="store_true")
    ap.add_argument("--pair", type=int, default=15)
    ap.add_argument("--thrp", type=int, default=0)
    ap.add_argument("--first", type=int, default=5)
    ap.add_argument("--cs", default="0,4,1,5,12,3")
    ap.add_argument("--lstride", type=int, default=256)
    ap.add_argument("--tail1", type=int, default=0)
    ap.add_argument("--ldat", type=int, default=6)
    ap.add_argument("--ann", type=int, default=0)
    ap.add_argument("-o", default="/dev/stdout")
    a = ap.parse_args()
    il = lambda s: tuple(int(x) for x in s.split(",")) if s else ()
    sc = il(a.sched); ks = il(a.ksched)
    for s_ in (sc, ks):
        ss = sorted(s_, reverse=True)
        assert all(x - a.Q >= 1 for x in ss) and all(ss[i] - a.Q >= ss[i + 1] for i in range(len(ss) - 1))
    open(a.o, "w").write(gen(pat(a.thrk), pat(a.neutral), [pat(x) for x in a.lv.split(",")], il(a.cuts), sc, a.Q,
                             stamp=a.stamp, ksched=ks, klevels=[pat(x) for x in a.klv.split(",")] if a.klv else None, pair=a.pair, thrp=a.thrp, first=a.first, cs=il(a.cs), lstride=a.lstride, tail1=a.tail1, ldat=a.ldat, ann=a.ann))
```
